```python
import torch

def _softmax(x, axis=-1):
    return torch.softmax(x, dim=axis)

def _gelu(x):
    return torch.nn.functional.gelu(x, approximate='tanh')

def _silu(x):
    return torch.nn.functional.silu(x)

def _sigmoid(x):
    return torch.sigmoid(x)

def _layernorm(x, axis=-1, eps=1e-05):
    m = x.mean(dim=axis, keepdim=True)
    v = x.var(dim=axis, keepdim=True, unbiased=False)
    return (x - m) / torch.sqrt(v + eps)

def _scatter_add(tgt, idx, src, axis=0):
    return tgt.clone().index_add_(axis, idx, src)

def _segment_sum(src, seg, n):
    out = torch.zeros((n,) + src.shape[1:], dtype=src.dtype)
    return out.index_add_(0, seg, src)

def _pad(x, pw):
    flat = tuple((v for pair in reversed(pw) for v in pair))
    return torch.nn.functional.pad(x, flat)
kernel_name = 'adaLN_cond__grouped_kv_mqa__glu_gated_reglu__prompt'

def setup_inputs():

    _w = lambda a: (lambda t: t.to(torch.bfloat16) if t.is_floating_point() else t)(torch.as_tensor(a))

    def _A_setup():
        B, S, D, H = (1, 2048, 448, 16)
        Dh = D // H
        return {'x': _w((lambda *s: torch.randn(*s, dtype=torch.bfloat16) * 0.05)(B, S, D)), 'wq': _w((lambda *s: torch.randn(*s, dtype=torch.bfloat16) * 0.05)(D, H * Dh)), 'wk': _w((lambda *s: torch.randn(*s, dtype=torch.bfloat16) * 0.05)(D, Dh)), 'wv': _w((lambda *s: torch.randn(*s, dtype=torch.bfloat16) * 0.05)(D, Dh)), 'wo': _w((lambda *s: torch.randn(*s, dtype=torch.bfloat16) * 0.05)(H * Dh, D))}
    _A_in = _A_setup()

    def _B_setup():
        B, S, D, F = (1, 2048, 448, 1792)
        return {'x': _w((lambda *s: torch.randn(*s, dtype=torch.bfloat16) * 0.05)(B, S, D)), 'W_gate': _w((lambda *s: torch.randn(*s, dtype=torch.bfloat16) * 0.8)(D, F) * (2.0 / D) ** 0.5), 'W_up': _w((lambda *s: torch.randn(*s, dtype=torch.bfloat16) * 0.8)(D, F) * (2.0 / D) ** 0.5), 'W_down': _w((lambda *s: torch.randn(*s, dtype=torch.bfloat16) * 0.8)(F, D) * (1.0 / F) ** 0.5)}
    _B_in = _B_setup()
    return {'A_x': _A_in['x'], 'A_wq': _A_in['wq'], 'A_wk': _A_in['wk'], 'A_wv': _A_in['wv'], 'A_wo': _A_in['wo'], 'B_x': _B_in['x'], 'B_W_gate': _B_in['W_gate'], 'B_W_up': _B_in['W_up'], 'B_W_down': _B_in['W_down'], 'c': _w((lambda *s: torch.randn(*s, dtype=torch.bfloat16) * 0.2)(1, 448) * 8.0), 'w_mod': _w((lambda *s: torch.randn(*s, dtype=torch.bfloat16) * 0.2)(448, 6 * 448) * 448 ** (-0.5) * 8.0)}

def reference(A_x, A_wq, A_wk, A_wv, A_wo, B_x, B_W_gate, B_W_up, B_W_down, c, w_mod):

    def _A_ref(x, wq, wk, wv, wo):
        B, S, D = x.shape
        H = 16
        Dh = D // H
        q = (lambda x, *d: x.permute(*d))((x @ wq).reshape(B, S, H, Dh), 0, 2, 1, 3)
        k = x @ wk
        v = x @ wv
        scores = torch.einsum('bhqd,bkd->bhqk', q, k) * Dh ** (-0.5)
        p = _softmax(scores, axis=-1)
        o = torch.einsum('bhqk,bkd->bhqd', p, v)
        return (lambda x, *d: x.permute(*d))(o, 0, 2, 1, 3).reshape(B, S, H * Dh) @ wo

    def _B_ref(x, W_gate, W_up, W_down):
        gate = torch.einsum('bsd,df->bsf', x, W_gate)
        up = torch.einsum('bsd,df->bsf', x, W_up)
        gate = gate * (lambda x, dt: x.to(dt))(gate > 0, gate.dtype)
        h = gate * up
        return torch.einsum('bsf,fd->bsd', h, W_down)
    x = A_x
    mod = (_silu(c) @ w_mod).reshape(c.shape[0], 6, 1, -1)
    sa, ca, ga, sb, cb, gb = (mod[:, 0].clone(), mod[:, 1].clone(), mod[:, 2].clone(), mod[:, 3].clone(), mod[:, 4].clone(), mod[:, 5].clone())
    h = _layernorm(x, axis=-1) * (1 + ca) + sa
    x = x + ga * _A_ref(h, A_wq, A_wk, A_wv, A_wo)
    h = _layernorm(x, axis=-1) * (1 + cb) + sb
    x = x + gb * _B_ref(h, B_W_gate, B_W_up, B_W_down)
    return x
```

```python
import re

REG_RE = re.compile(r'^(-|\|)?(abs\()?([vas])(\d+|\[(\d+):(\d+)\])\)?\|?$')
TRANS = ('v_exp_f32', 'v_log_f32', 'v_rcp_f32', 'v_rsq_f32', 'v_sqrt_f32', 'v_sin_f32', 'v_cos_f32', 'v_rcp_iflag_f32')

def regs_of(tok):
    tok = tok.strip()
    if tok == 'vcc': return ['vcc_lo', 'vcc_hi']
    if tok == 'exec': return ['exec_lo', 'exec_hi']
    if tok in ('vcc_lo', 'vcc_hi', 'exec_lo', 'exec_hi', 'm0'): return [tok]
    m = REG_RE.match(tok)
    if not m: return []
    k = m.group(3)
    if m.group(5) is not None:
        return [f'{k}{i}' for i in range(int(m.group(5)), int(m.group(6)) + 1)]
    return [f'{k}{int(m.group(4))}']

def split_ops(s):
    out, depth, cur = [], 0, ''
    for ch in s:
        if ch in '[(': depth += 1
        if ch in '])': depth -= 1
        if ch == ',' and depth == 0:
            out.append(cur.strip()); cur = ''
        else: cur += ch
    if cur.strip(): out.append(cur.strip())
    return out

class Ins:
    __slots__ = ('text', 'op', 'cls', 'rd', 'wr', 'tokr', 'tokw', 'mods', 'label', 'target', 'passes', 'srcc', 'srcab', 'data', 'auto', 'wide')
    def __init__(self, text, tokr=(), tokw=()):
        self.text = text; self.tokr = list(tokr); self.tokw = list(tokw)
        self.label = None; self.target = None; self.passes = 0; self.srcc = []; self.srcab = []; self.data = []; self.auto = False; self.wide = False
        self.rd = []; self.wr = []; self.mods = ''
        t = text.split(';')[0].strip()
        if t.endswith(':'):
            self.op = 'label'; self.cls = 'label'; self.label = t[:-1]; return
        if t.startswith('.') or t == '':
            self.op = 'dir'; self.cls = 'dir'; return
        if t == '@need':
            self.op = '@need'; self.cls = 'pseudo'; return
        sp = t.split(None, 1)
        op = sp[0]; rest = sp[1] if len(sp) > 1 else ''
        self.op = op
        ops = split_ops(rest)
        if ops:
            last = ops[-1].split()
            ops[-1] = last[0]; self.mods = ' '.join(last[1:])
        R = [regs_of(o) for o in ops]
        flat = lambda l: [x for y in l for x in y]
        base = re.sub(r'_(e32|e64|dpp|sdwa)$', '', op)
        if op.startswith('v_mfma'):
            self.cls = 'mfma'
            self.passes = 8 if '32x32' in op else 4
            self.wr = R[0]; self.srcab = R[1] + R[2]; self.srcc = R[3]; self.rd = self.srcab + self.srcc
        elif op.startswith('v_'):
            self.cls = 'valu'
            if base.startswith('v_cmp'):
                self.wr = list(R[0]); self.rd = flat(R[1:])
                if base.startswith('v_cmpx'): self.wr += ['exec_lo', 'exec_hi']
            elif base in ('v_permlane32_swap_b32', 'v_permlane16_swap_b32', 'v_swap_b32'):
                self.wr = R[0] + R[1]; self.rd = R[0] + R[1]
            elif re.match(r'v_(add|sub|subrev|addc|subb|subbrev)_co_', base) or base.startswith('v_mad_u64') or base.startswith('v_div_scale'):
                self.wr = R[0] + R[1]; self.rd = flat(R[2:])
            else:
                self.wr = R[0]; self.rd = flat(R[1:])
                if base.startswith(('v_fmac', 'v_mac', 'v_dot2c', 'v_writelane', 'v_pk_fmac')) or op.endswith('_dpp') or 'UNUSED_PRESERVE' in self.mods or 'quad_perm' in self.mods or 'row_' in self.mods:
                    self.rd = self.rd + R[0]
            if base == 'v_nop': self.cls = 'nop'
        elif op.startswith('buffer_'):
            self.cls = 'vmem'
            if op in ('buffer_wbl2', 'buffer_inv'):
                pass
            elif op.startswith('buffer_load'):
                if ' lds' in ' ' + self.mods:
                    self.rd = flat(R) + ['m0']
                else:
                    self.wr = R[0]; self.rd = flat(R[1:])
            elif op.startswith('buffer_store'):
                self.rd = flat(R); self.data = R[0]; self.wide = len(R[0]) > 2
            elif op.startswith('buffer_atomic'):
                self.rd = flat(R); self.data = R[0]
                if 'sc0' in self.mods: self.wr = R[0]
            else: raise ValueError(text)
        elif op.startswith('global_'):
            self.cls = 'vmem'
            if op.startswith('global_load_lds'):
                self.rd = flat(R) + ['m0']
            elif op.startswith('global_load'):
                self.wr = R[0]; self.rd = flat(R[1:])
            elif op.startswith('global_store'):
                self.rd = flat(R); self.data = R[1]; self.wide = len(R[1]) > 2
            else: raise ValueError(text)
        elif op.startswith('ds_'):
            self.cls = 'ds'
            if op.startswith(('ds_read', 'ds_bpermute', 'ds_permute', 'ds_swizzle')):
                self.wr = R[0]; self.rd = flat(R[1:])
            elif op.startswith(('ds_write', 'ds_or_b32', 'ds_add_u32', 'ds_max_u32', 'ds_add_f32')):
                self.rd = flat(R)
            else: raise ValueError(text)
        elif op.startswith(('s_load', 's_memtime', 's_memrealtime', 's_buffer_load')):
            self.cls = 'smem'; self.wr = R[0]; self.rd = flat(R[1:])
        elif op == 's_waitcnt': self.cls = 'wait'; self.mods = rest
        elif op == 's_nop': self.cls = 'nop'; self.passes = int(rest) + 1
        elif op in ('s_branch',) or op.startswith('s_cbranch'):
            self.cls = 'branch'; self.target = ops[0]
            if 'vcc' in op: self.rd = ['vcc_lo', 'vcc_hi']
        elif op in ('s_barrier', 's_endpgm', 's_sleep', 's_setprio', 's_sethalt'):
            self.cls = 'salu'
        elif op.startswith('s_'):
            self.cls = 'salu'
            if op.startswith(('s_cmp', 's_bitcmp')): self.rd = flat(R)
            elif op.startswith('s_setreg'): self.rd = flat(R)
            else:
                self.wr = list(R[0]); self.rd = flat(R[1:])
                if 'saveexec' in op: self.wr += ['exec_lo', 'exec_hi']
                if op.startswith(('s_addk', 's_mulk', 's_cmov', 's_bitset')): self.rd += R[0]
        else:
            raise ValueError('unknown instruction: ' + text)

BIG = 10 ** 6
class State:
    def __init__(self):
        self.vm = {}; self.lg = {}; self.smem_any = False; self.hz = {}
    def copy(self):
        s = State(); s.vm = dict(self.vm); s.lg = dict(self.lg); s.smem_any = self.smem_any; s.hz = dict(self.hz); return s
    def merge(self, o):
        ch = False
        for a, b in ((self.vm, o.vm), (self.lg, o.lg), (self.hz, o.hz)):
            for k, v in b.items():
                if k not in a or v < a[k]:
                    a[k] = v; ch = True
        if o.smem_any and not self.smem_any: self.smem_any = True; ch = True
        return ch

def is_v(r): return r[0] in 'va' and r[1:].isdigit()
def is_s(r): return (r[0] == 's' and r[1:].isdigit()) or r.startswith('vcc')

def need_waits(st, ins):
    vm = lg = None
    touched = list(ins.rd) + list(ins.tokr)
    for r in ins.wr:
        if r in st.vm and ins.cls != 'vmem': touched.append(r)
        if r in st.lg and (ins.cls != 'ds' or st.smem_any): touched.append(r)
    for r in touched:
        if r in st.vm:
            n = min(st.vm[r], 63); vm = n if vm is None else min(vm, n)
        if r in st.lg:
            n = 0 if st.smem_any else min(st.lg[r], 15); lg = n if lg is None else min(lg, n)
    return vm, lg

def apply_wait(st, vm, lg):
    if vm is not None: st.vm = {k: v for k, v in st.vm.items() if v < vm}
    if lg is not None:
        if lg == 0: st.lg = {}; st.smem_any = False
        elif not st.smem_any: st.lg = {k: v for k, v in st.lg.items() if v < lg}

def need_nops(st, ins):
    n = 0
    hz = st.hz
    def req(key, ws):
        nonlocal n
        if key in hz: n = max(n, ws - hz[key])
    c = ins.cls
    if c == 'mfma':
        for r in ins.rd:
            req(('vw', r), 2); req(('dot', r), 3)
        dkey = (ins.srcc[0], len(ins.srcc), ins.passes) if ins.srcc else None
        for p, wab, wc in ((8, 12, 10), (4, 8, 6)):
            for r in ins.srcab: req(('md', r, p), wab)
            for r in set(ins.srcc) | set(ins.wr):
                if ('md', r, p) in hz:
                    same = dkey is not None and ('mx',) + dkey in hz and hz[('mx',) + dkey] == hz[('md', r, p)] and r in ins.srcc
                    if not same: req(('md', r, p), wc)
        req(('execv',), 4)
    elif c in ('valu', 'vmem', 'ds'):
        for r in set(ins.rd) | set(ins.wr):
            req(('md', r, 8), 12); req(('md', r, 4), 8)
        if c == 'valu':
            base = re.sub(r'_(e32|e64|dpp|sdwa)$', '', ins.op)
            isdpp = ins.op.endswith('_dpp') or 'quad_perm' in ins.mods or 'row_' in ins.mods
            for r in ins.wr:
                req(('mc', r, 8), 7); req(('mc', r, 4), 3); req(('st', r), 2)
            for r in ins.rd:
                req(('tr', r), 1); req(('half', r), 1)
                if is_s(r): req(('sw', r), 4 if base in ('v_readlane_b32', 'v_writelane_b32') else 2)
                if isdpp or base.startswith('v_permlane'): req(('vw', r), 2)
                if base in ('v_readlane_b32', 'v_readfirstlane_b32'): req(('vw', r), 1)
            if base.startswith('v_dot2'):
                acc = set(ins.wr) if base.startswith('v_dot2c') else set(ins.rd[-1:])
                for r in set(ins.rd) | set(ins.wr):
                    if ('dot', r) in hz and not (r in acc and hz.get(('dotop', r, base)) == hz[('dot', r)] and ins.rd[:2].count(r) == 0): req(('dot', r), 3)
            else:
                for r in set(ins.rd) | set(ins.wr): req(('dot', r), 3)
            if isdpp: req(('execv',), 5)
            if base.startswith(('v_readlane', 'v_readfirstlane', 'v_writelane', 'v_permlane')): req(('execv',), 4)
        else:
            for r in ins.wr: req(('st', r), 1)
            for r in ins.rd:
                req(('dot', r), 3); req(('tr', r), 1)
                if c == 'vmem' and is_s(r): req(('sw', r), 5)
            if 'm0' in ins.rd: req(('m0',), 1)
    elif c in ('salu', 'smem', 'branch'):
        for r in ins.rd:
            if is_s(r) and not r.startswith('vcc'): req(('sw', r), 1)
    return n

def step(st, ins):
    c = ins.cls
    if c in ('label', 'dir', 'pseudo'): return
    adv = ins.passes if c == 'nop' and ins.op == 's_nop' else 1
    st.hz = {k: v + adv for k, v in st.hz.items() if v + adv < 24}
    hz = st.hz
    if c == 'wait':
        m = re.search(r'vmcnt\((\d+)\)', ins.mods); vm = int(m.group(1)) if m else None
        m = re.search(r'lgkmcnt\((\d+)\)', ins.mods); lg = int(m.group(1)) if m else None
        apply_wait(st, vm, lg); return
    if c == 'vmem':
        st.vm = {k: v + 1 for k, v in st.vm.items()}
        for r in ins.wr + ins.tokw: st.vm[r] = 0
        if ins.wide:
            for r in ins.data: hz[('st', r)] = 0
    elif c == 'ds':
        st.lg = {k: v + 1 for k, v in st.lg.items()}
        for r in ins.wr + ins.tokw: st.lg[r] = 0
    elif c == 'smem':
        st.smem_any = True
        for r in ins.wr + ins.tokw: st.lg[r] = 0
    elif c == 'mfma':
        for r in ins.wr:
            hz.pop(('md', r, 8), None); hz.pop(('md', r, 4), None)
            hz[('md', r, ins.passes)] = 0
        hz[('mx', ins.wr[0], len(ins.wr), ins.passes)] = 0
        for r in ins.srcc: hz[('mc', r, ins.passes)] = 0
    elif c == 'valu':
        base = re.sub(r'_(e32|e64|dpp|sdwa)$', '', ins.op)
        for r in ins.wr:
            if is_v(r):
                hz[('vw', r)] = 0
                if base in TRANS: hz[('tr', r)] = 0
                if base.startswith('v_dot2'):
                    hz[('dot', r)] = 0; hz[('dotop', r, base)] = 0
                if 'dst_sel:WORD' in ins.mods or 'dst_sel:BYTE' in ins.mods or base.startswith('v_fma_mixhi'): hz[('half', r)] = 0
            elif r.startswith('exec'): hz[('execv',)] = 0
            else: hz[('sw', r)] = 0
    elif c == 'salu':
        if 'm0' in ins.wr: hz[('m0',)] = 0

class Asm:
    def __init__(self):
        self.ins = []
        self.nlab = 0
    def __call__(self, text, r=(), w=()):
        for line in text.split('\n'):
            line = line.strip()
            if not line: continue
            self.ins.append(Ins(line, r, w))
    def need(self, *toks):
        self.ins.append(Ins('@need', toks, ()))
    def lab(self, stem='L'):
        self.nlab += 1
        return f'{stem}_{self.nlab}'
    def finalize(self, verbose=False):
        code = self.ins
        back = {}
        for it in range(20):
            out = []; st = State(); fwd = {}; seen = set(); changed = False; dead = False
            for ins in code:
                if ins.cls == 'label':
                    ins_states = [s for s in (fwd.get(ins.label), back.get(ins.label)) if s is not None]
                    if dead:
                        st = ins_states[0].copy() if ins_states else State()
                    for s in ins_states: st.merge(s)
                    dead = False; seen.add(ins.label); out.append(ins); continue
                if ins.cls == 'dir': out.append(ins); continue
                vm, lg = need_waits(st, ins)
                if vm is not None or lg is not None:
                    t = 's_waitcnt' + (f' vmcnt({vm})' if vm is not None else '') + (f' lgkmcnt({lg})' if lg is not None else '')
                    w = Ins(t); w.auto = True; step(st, w); out.append(w); changed = True
                n = need_nops(st, ins)
                if n > 0:
                    w = Ins(f's_nop {n-1}'); w.auto = True; step(st, w); out.append(w); changed = True
                step(st, ins); out.append(ins)
                if ins.cls == 'branch':
                    d = back if ins.target in seen else fwd
                    if ins.target in d:
                        if d[ins.target].merge(st) and d is back: changed = True
                    else:
                        d[ins.target] = st.copy()
                        if d is back: changed = True
                    if ins.op == 's_branch': dead = True
                if ins.op == 's_endpgm': dead = True
            code = out
            if not changed: break
        else:
            raise RuntimeError('no fixpoint')
        self.final = code
        lines = []
        for i in code:
            if i.cls == 'pseudo': continue
            lines.append(i.text if i.cls in ('label', 'dir') else '  ' + i.text)
        if verbose:
            na = sum(1 for i in code if i.auto and i.op == 's_nop'); nw = sum(1 for i in code if i.auto and i.op == 's_waitcnt')
            print(f'instructions: {sum(1 for i in code if i.cls not in ("label","dir","pseudo"))}, auto nops {na}, auto waits {nw}')
        return '\n'.join(lines) + '\n'
```

```python
import sys, struct
sys.path.insert(0, 'work')
from asmlib import Asm

KNAME = 'adaLN_cond__grouped_kv_mqa__glu_gated_reglu__prompt_kernel'

WS_EPOCH = 0
WS_MODG = 0x1000
WS_FKV = 0x4000
WS_FO = 0x6000
WS_FX = 0x7000
WS_FH = 0x8000
WS_ST = 0x10000
WS_KV = 0x40000
WS_WO = 0x80000
WS_W1 = 0x100000
WS_WD = 0x410000
WS_O = 0x600000
WS_H2 = 0x800000
WS_X2 = 0xA00000
WS_HF = 0xC00000
WS_TS = 0x1400000
WS_DBG = 0x1500000
WS_SIZE = 0x2000000
OOB = 0x7ff00000

L_WQ = 0
L_SHUF = 0
L_WM = 32768
L_SILU = 49152
L_KVW = 100352
L_H1 = 100352
L_QX = 153600
L_KOWN = 161792
L_LOC = 162816
SLOT = 28672
L_RB = 114688
LDS_BYTES = 163840

def f32(x): return '0x%08x' % struct.unpack('<I', struct.pack('<f', x))[0]

class Regs:
    def __init__(self, kind, n, start=0):
        self.kind = kind; self.free = [i >= start for i in range(n)]; self.hi = 0
    def alloc(self, n=1, align=None):
        if align is None: align = 1 if n == 1 else 2
        i = 0
        while i + n <= len(self.free):
            if i % align == 0 and all(self.free[i:i + n]):
                for j in range(i, i + n): self.free[j] = False
                self.hi = max(self.hi, i + n)
                return i
            i += 1
        raise RuntimeError(f'out of {self.kind} registers ({n})')
    def rel(self, i, n=1):
        for j in range(i, i + n):
            assert not self.free[j], (self.kind, j)
            self.free[j] = True

def rr(k, i, n=1): return f'{k}{i}' if n == 1 else f'{k}[{i}:{i+n-1}]'
def v(i, n=1): return rr('v', i, n)
def ac(i, n=1): return rr('a', i, n)
def s(i, n=1): return rr('s', i, n)

def generate(opt=None):
    opt = dict(opt or {})
    TS = opt.get('ts', False)
    STOP = opt.get('stop', None)
    FORCE_NONLOCAL = opt.get('nonlocal', False)
    FORCE_SLOW = opt.get('slow', False)
    a = Asm()
    V = Regs('v', 256, 1); S = Regs('s', 100, 3)
    sX = S.alloc(4, 4); sWQ = S.alloc(4, 4); sKV = S.alloc(4, 4); sSH = S.alloc(4, 4); sWM = S.alloc(4, 4)
    sWS = S.alloc(4, 4); sOUT = S.alloc(4, 4); sCC = S.alloc(4, 4)
    pWK = S.alloc(4, 4)
    pWO = S.alloc(2, 2); pWG = S.alloc(4, 4); pWD = S.alloc(2, 2)
    sW = S.alloc(); sL = S.alloc(); sT = S.alloc(); sHQ = S.alloc(); sG = S.alloc(); sM = S.alloc()
    sTAG = S.alloc(); sB = S.alloc(); sXCC = S.alloc(); sLOC = S.alloc()
    t0 = S.alloc(); t1 = S.alloc(); t2 = S.alloc(); t3 = S.alloc(); t4 = S.alloc(); t5 = S.alloc()
    sM56 = S.alloc(2, 2)
    nts = [0]
    tsnames = []
    vTS = V.alloc() if TS else None
    def stamp(name):
        if TS:
            assert nts[0] < 30
            if nts[0]: a(f'v_writelane_b32 {v(vTS)}, s100, {nts[0]-1}')
            a(f's_memrealtime s[100:101]'); nts[0] += 1; tsnames.append(name)
    def SR(x): return s(x, 4)
    vLane = V.alloc(); vL16 = V.alloc(); vTag = V.alloc(); vI = V.alloc(); vGp = V.alloc()
    vt0 = V.alloc(); vt1 = V.alloc(); vt2 = V.alloc(); vt3 = V.alloc()
    vWDa = V.alloc(2); vRr = V.alloc(); vHi32 = V.alloc(); vRow = V.alloc()

    def poll(load_fn, check_fn):
        lp = a.lab('Lpoll'); ld = a.lab('Lpdone')
        a(f'{lp}:')
        load_fn()
        a(f's_sub_u32 {s(sB)}, {s(sB)}, 1\ns_cmp_lt_i32 {s(sB)}, 0\ns_cbranch_scc1 {ld}')
        check_fn()
        a(f's_cbranch_vccnz {lp}\n{ld}:')
    def tagcheck(regs, tmp, mask=False):
        a(f'v_xor_b32 {v(tmp)}, {v(vTag)}, {v(regs[0])}')
        for r in regs[1:]:
            a(f'v_bitop3_b32 {v(tmp)}, {v(tmp)}, {v(r)}, {v(vTag)} bitop3:0xf6')
        if mask: a(f'v_cmp_lt_u32 vcc, 15, {v(tmp)}')
        else: a(f'v_cmp_ne_u32 vcc, 0, {v(tmp)}')
    def unpack(dst, src):
        a(f'v_lshlrev_b32 {v(dst)}, 16, {v(src)}')
        a(f'v_and_b32 {v(dst + 1)}, 0xffff0000, {v(src)}')
    def signal(vaddr_sgpr_off, local):
        a('s_waitcnt vmcnt(0)')
        if local:
            ln = a.lab('Lsig_nl'); le = a.lab('Lsig_e')
            a(f's_cmp_eq_u32 {s(sLOC)}, 0\ns_mov_b64 exec, 1\ns_cbranch_scc1 {ln}')
            a(f'buffer_store_dword {v(vTag)}, off, {SR(sWS)}, {s(vaddr_sgpr_off)}')
            a(f'{le}:\ns_mov_b64 exec, -1')
            cold.append((ln, le, f'buffer_wbl2 sc1\ns_waitcnt vmcnt(0)\nbuffer_store_dword {v(vTag)}, off, {SR(sWS)}, {s(vaddr_sgpr_off)} sc1'))
    def acquire():
        ln = a.lab('Lacq_nl'); le = a.lab('Lacq_e')
        a(f's_cmp_eq_u32 {s(sLOC)}, 0\ns_cbranch_scc1 {ln}\n{le}:')
        cold.append((ln, le, 'buffer_inv sc1\ns_waitcnt vmcnt(0)'))
    cold = []

    a(f's_cmp_ge_u32 s2, 256\ns_cbranch_scc1 Lend')
    stamp('start')
    a(f'''s_load_dwordx2 {s(sWS,2)}, s[0:1], 104
    s_load_dwordx2 {s(sCC,2)}, s[0:1], 72
    s_load_dwordx2 {s(sWM,2)}, s[0:1], 80
    s_load_dwordx2 {s(sX,2)}, s[0:1], 0
    s_load_dwordx4 {s(pWK,4)}, s[0:1], 16
    s_load_dwordx2 {s(sWQ,2)}, s[0:1], 8
    s_load_dwordx2 {s(pWO,2)}, s[0:1], 32
    s_load_dwordx4 {s(pWG,4)}, s[0:1], 48
    s_load_dwordx2 {s(pWD,2)}, s[0:1], 64
    s_load_dwordx2 {s(sOUT,2)}, s[0:1], 88''')
    a(f'v_lshrrev_b32 {v(vt0)}, 6, v0')
    a(f'v_and_b32 {v(vLane)}, 63, v0')
    a(f'v_readfirstlane_b32 {s(sW)}, {v(vt0)}')
    for srd, n in ((sX, 1835008), (sWQ, 401408), (sKV, 25088), (sWM, 448 * 5376), (sWS, WS_SIZE), (sOUT, 1835008), (sCC, 896)):
        a(f's_mov_b32 {s(srd+2)}, {n}\ns_mov_b32 {s(srd+3)}, 0x20000')
    a(f's_mov_b32 {s(sSH+3)}, 0x20000')
    a(f'''s_getreg_b32 {s(sXCC)}, hwreg(HW_REG_XCC_ID, 0, 4)
    s_and_b32 {s(t0)}, s2, 7
    s_lshr_b32 {s(t1)}, s2, 3
    s_lshl_b32 {s(sL)}, {s(t0)}, 5
    s_add_u32 {s(sL)}, {s(sL)}, {s(t1)}
    s_lshr_b32 {s(sT)}, {s(sL)}, 2
    s_and_b32 {s(sHQ)}, {s(sL)}, 3
    s_lshr_b32 {s(sG)}, {s(sL)}, 4
    s_and_b32 {s(sM)}, {s(sL)}, 15
    s_mov_b32 {s(sB)}, 0x20000
    s_mov_b32 {s(sM56)}, -1
    s_mov_b32 {s(sM56+1)}, 0x00ffffff''')
    sU = S.alloc(); sUok = S.alloc()
    a(f'''s_lshr_b32 {s(t2)}, {s(t1)}, 2
    s_lshl_b32 {s(t2)}, {s(t2)}, 3
    s_add_u32 {s(t2)}, {s(t2)}, {s(t0)}
    s_and_b32 {s(t3)}, {s(t1)}, 3
    s_lshl_b32 {s(sU)}, {s(t2)}, 2
    s_add_u32 {s(sU)}, {s(sU)}, {s(t3)}
    s_cmp_lt_u32 {s(t2)}, 42
    s_cselect_b32 {s(sUok)}, 1, 0
    s_cmp_eq_u32 {s(sW)}, 3
    s_cselect_b32 {s(sUok)}, {s(sUok)}, 0''')
    a(f'''v_lshlrev_b32 {v(vL16)}, 4, {v(vLane)}
    v_and_b32 {v(vI)}, 15, {v(vLane)}
    v_lshrrev_b32 {v(vGp)}, 4, {v(vLane)}''')
    vX56 = V.alloc()
    a(f'''v_mov_b32 {v(vt0)}, {OOB}
    v_cmp_gt_u32 vcc, 56, {v(vLane)}
    v_cndmask_b32 {v(vX56)}, {v(vt0)}, {v(vL16)}, vcc''')
    vWM = V.alloc()
    a(f'''v_lshrrev_b32 {v(vt0)}, 1, {v(vLane)}
    v_mul_u32_u24 {v(vt0)}, 5376, {v(vt0)}
    v_and_b32 {v(vt1)}, 1, {v(vLane)}
    v_lshl_add_u32 {v(vWM)}, {v(vt1)}, 4, {v(vt0)}''')
    sSrc = S.alloc(); sStr8 = S.alloc(); sDst = S.alloc(); sDP = S.alloc(); sDK = S.alloc(); sSHn = S.alloc()
    vSHs = V.alloc(); vSHs3 = V.alloc(); vSHd = V.alloc(); vSHr = V.alloc()
    a(f'''s_mul_i32 {s(t0)}, {s(sL)}, 2341
    s_lshr_b32 {s(t0)}, {s(t0)}, 16
    s_mul_i32 {s(t1)}, {s(t0)}, 28
    s_sub_u32 {s(t1)}, {s(sL)}, {s(t1)}
    s_mul_i32 {s(t2)}, {s(sL)}, 9363
    s_lshr_b32 {s(t2)}, {s(t2)}, 16
    s_mul_i32 {s(t3)}, {s(t2)}, 7
    s_sub_u32 {s(t3)}, {s(sL)}, {s(t3)}
    s_cmp_lt_u32 {s(sW)}, 2
    s_cselect_b32 {s(t0)}, {s(t0)}, {s(t2)}
    s_cselect_b32 {s(t1)}, {s(t1)}, {s(t3)}''')
    a(f'''s_mov_b32 {s(t2)}, 896
    s_mov_b32 {s(t3)}, {64*896}
    s_mov_b32 {s(sDP)}, 1024
    s_mov_b32 {s(sDK)}, 2048
    s_mov_b32 {s(t4)}, 256
    s_mov_b32 {s(sDst)}, {112*2048}
    s_cmov_b32 {s(t2)}, 3584
    s_cmov_b32 {s(t3)}, {64*3584}
    s_cmov_b32 {s(sDP)}, {2*28672}
    s_cmov_b32 {s(sDK)}, 1024
    s_cmov_b32 {s(t4)}, 28672
    s_cmov_b32 {s(sDst)}, {4*28672}
    s_mov_b32 {s(t5)}, 512
    s_mov_b32 {s(sSH+2)}, {448*3584}
    s_mov_b32 {s(sSHn)}, 196
    s_cmp_eq_u32 {s(sW)}, 3
    s_cselect_b32 {s(t3)}, {28*896}, {s(t3)}
    s_cselect_b32 {s(sDP)}, 32768, {s(sDP)}
    s_cselect_b32 {s(sDK)}, 512, {s(sDK)}
    s_cselect_b32 {s(t4)}, 16384, {s(t4)}
    s_cselect_b32 {s(sDst)}, 65536, {s(sDst)}
    s_cselect_b32 {s(t5)}, 256, {s(t5)}
    s_cselect_b32 {s(sSH+2)}, 401408, {s(sSH+2)}
    s_cselect_b32 {s(sSHn)}, 112, {s(sSHn)}''')
    a(f'''v_lshrrev_b32 {v(vt0)}, 3, {v(vLane)}
    v_mul_lo_u32 {v(vt1)}, {v(vt0)}, {s(t2)}
    v_and_b32 {v(vt2)}, 7, {v(vLane)}
    v_lshl_add_u32 {v(vSHs)}, {v(vt2)}, 4, {v(vt1)}
    v_mov_b32 {v(vSHs3)}, {v(vSHs)}
    v_and_b32 {v(vt0)}, 1, {v(vGp)}
    v_mul_lo_u32 {v(vt1)}, {v(vt0)}, {s(t4)}
    v_lshrrev_b32 {v(vt2)}, 1, {v(vGp)}
    v_mul_lo_u32 {v(vt3)}, {v(vt2)}, {s(t5)}
    v_add_u32 {v(vt1)}, {v(vt1)}, {v(vt3)}
    v_lshl_add_u32 {v(vSHd)}, {v(vI)}, 4, {v(vt1)}''')
    lw = a.lab('Lw3')
    a(f'''s_cbranch_scc0 {lw}
    s_mov_b32 exec_lo, 0
    v_mov_b32 {v(vSHs3)}, {OOB}
    s_mov_b64 exec, -1
    {lw}:''')
    vSwp8 = V.alloc()
    a(f'''v_and_b32 {v(vt1)}, 1, {v(vI)}
    v_lshlrev_b32 {v(vt1)}, 4, {v(vt1)}
    v_and_b32 {v(vt3)}, 2, {v(vI)}
    v_lshl_add_u32 {v(vSwp8)}, {v(vt3)}, 2, {v(vt1)}''')
    a(f'''v_lshrrev_b32 {v(vt1)}, 2, {v(vI)}
    v_lshl_add_u32 {v(vt1)}, {v(vt2)}, 3, {v(vt1)}
    v_lshlrev_b32 {v(vt1)}, 7, {v(vt1)}
    v_lshl_add_u32 {v(vt1)}, {v(vt0)}, 5, {v(vt1)}
    v_add_u32 {v(vt1)}, {v(vt1)}, {v(vSwp8)}
    s_lshl_b32 {s(t4)}, {s(sW)}, 13
    v_add_u32 {v(vSHr)}, {s(t4)}, {v(vt1)}''')
    a(f'''s_mul_i32 {s(sSrc)}, {s(t0)}, {s(t3)}
    s_lshl_b32 {s(t4)}, {s(t1)}, 7
    s_add_u32 {s(sSrc)}, {s(sSrc)}, {s(t4)}
    s_lshl_b32 {s(sStr8)}, {s(t2)}, 3
    s_mul_i32 {s(sDst)}, {s(sDst)}, {s(t1)}
    s_mul_i32 {s(t4)}, {s(t0)}, {s(sDK)}
    s_cmp_eq_u32 {s(sW)}, 3
    s_cselect_b32 {s(t5)}, 1, 2
    s_lshl_b32 {s(t4)}, {s(t4)}, {s(t5)}
    s_add_u32 {s(sDst)}, {s(sDst)}, {s(t4)}
    s_mov_b32 {s(t4)}, {WS_W1}
    s_cmp_eq_u32 {s(sW)}, 1
    s_cselect_b32 {s(t4)}, {WS_W1 + 256}, {s(t4)}
    s_cmp_eq_u32 {s(sW)}, 2
    s_cselect_b32 {s(t4)}, {WS_WD}, {s(t4)}
    s_cmp_eq_u32 {s(sW)}, 3
    s_cselect_b32 {s(t4)}, {WS_WO}, {s(t4)}
    s_add_u32 {s(sDst)}, {s(sDst)}, {s(t4)}''')
    sXR = S.alloc(8)
    for i in range(8):
        a(f'''s_lshl_b32 {s(t0)}, {s(sHQ)}, 3
        s_lshl_b32 {s(t1)}, {s(sW)}, 1
        s_add_u32 {s(t0)}, {s(t0)}, {s(t1)}
        s_add_u32 {s(t0)}, {s(t0)}, {8*(i>>1) + (i&1)}
        s_and_b32 {s(sXR+i)}, {s(t0)}, 31''') if i == 0 else a(f'''s_add_u32 {s(t1)}, {s(t0)}, {8*(i>>1) + (i&1)}
        s_and_b32 {s(sXR+i)}, {s(t1)}, 31''')
    a(f's_lshl_b32 {s(t5)}, {s(sT)}, 5')
    a('s_waitcnt lgkmcnt(0)')
    a(f's_load_dword {s(sTAG)}, {s(sWS,2)}, {WS_EPOCH}')
    stamp('karg')
    vC = V.alloc(4, 2)
    l1 = a.lab('Lnomod')
    a(f's_cmp_eq_u32 {s(sUok)}, 0\ns_cbranch_scc1 {l1}')
    a(f'buffer_load_dwordx4 {v(vC,4)}, {v(vL16)}, {SR(sCC)}, 0 offen')
    a(f's_lshl_b32 {s(t0)}, {s(sU)}, 5')
    for j in range(14):
        a(f's_mov_b32 m0, {L_WM + j*1024}')
        if j: a(f's_add_u32 {s(t0)}, {s(t0)}, {32*5376}')
        a(f'buffer_load_dwordx4 {v(vWM)}, {SR(sWM)}, {s(t0)} offen lds', w=[f'wm{j}'])
    a(f'{l1}:')
    vXR = V.alloc(32, 2)
    for i in range(8):
        a(f's_add_u32 {s(t0)}, {s(t5)}, {s(sXR+i)}\ns_mul_i32 {s(t0)}, {s(t0)}, 896')
        a(f'buffer_load_dwordx4 {v(vXR+4*i,4)}, {v(vX56)}, {SR(sX)}, {s(t0)} offen')
    a(f'''s_cmp_lt_u32 {s(sW)}, 2
    s_cselect_b32 {s(sKV)}, {s(pWK)}, {s(pWK+2)}
    s_cselect_b32 {s(sKV+1)}, {s(pWK+1)}, {s(pWK+3)}
    s_and_b32 {s(t0)}, {s(sW)}, 1
    s_mul_i32 {s(t0)}, {s(t0)}, {13*1024}
    s_mul_i32 {s(t1)}, {s(sW)}, {13*1024}
    s_add_u32 {s(t1)}, {s(t1)}, {L_KVW}''')
    for j in range(13):
        if j % 4 == 0:
            if j: a(f's_add_u32 {s(t0)}, {s(t0)}, 4096\ns_add_u32 {s(t1)}, {s(t1)}, 4096')
            a(f's_mov_b32 m0, {s(t1)}')
        a(f'buffer_load_dwordx4 {v(vL16)}, {SR(sKV)}, {s(t0)} offen offset:{(j%4)*1024} lds', w=['kvw'])
    a(f'''s_cmp_eq_u32 {s(sW)}, 0
    s_cselect_b32 {s(sSH)}, {s(pWG)}, {s(pWG+2)}
    s_cselect_b32 {s(sSH+1)}, {s(pWG+1)}, {s(pWG+3)}
    s_cmp_eq_u32 {s(sW)}, 2
    s_cselect_b32 {s(sSH)}, {s(pWD)}, {s(sSH)}
    s_cselect_b32 {s(sSH+1)}, {s(pWD+1)}, {s(sSH+1)}
    s_cmp_eq_u32 {s(sW)}, 3
    s_cselect_b32 {s(sSH)}, {s(pWO)}, {s(sSH)}
    s_cselect_b32 {s(sSH+1)}, {s(pWO+1)}, {s(sSH+1)}''')
    l2 = a.lab('Lnosh')
    a(f's_cmp_ge_u32 {s(sL)}, {s(sSHn)}\ns_cbranch_scc1 {l2}')
    a(f's_lshl_b32 {s(t1)}, {s(sW)}, 13')
    for j in range(8):
        if j == 4: a(f's_cmp_eq_u32 {s(sW)}, 3\ns_cbranch_scc1 {l2}')
        a(f's_add_u32 m0, {s(t1)}, {L_SHUF + j*1024}')
        if j: a(f's_add_u32 {s(sSrc)}, {s(sSrc)}, {s(sStr8)}')
        a(f'buffer_load_dwordx4 {v(vSHs3 if j == 3 else vSHs)}, {SR(sSH)}, {s(sSrc)} offen lds', w=['shuf'])
    a(f'{l2}:')
    a(f's_and_b32 {s(sTAG)}, {s(sTAG)}, 0xfffffff0\ns_add_u32 {s(sTAG)}, {s(sTAG)}, 0x9e3779b0\nv_mov_b32 {v(vTag)}, {s(sTAG)}')

    l3 = a.lab('Lnomod2')
    a(f's_cmp_eq_u32 {s(sUok)}, 0\ns_cbranch_scc1 {l3}')
    vCf = V.alloc(8, 2); vCe = V.alloc(8, 2)
    for j in range(4): unpack(vCf + 2*j, vC + j)
    for j in range(8): a(f'v_mul_f32 {v(vCe+j)}, {f32(-1.4426950408889634)}, {v(vCf+j)}')
    for j in range(8): a(f'v_exp_f32 {v(vCe+j)}, {v(vCe+j)}')
    for j in range(8): a(f'v_add_f32 {v(vCe+j)}, 1.0, {v(vCe+j)}')
    for j in range(8): a(f'v_rcp_f32 {v(vCe+j)}, {v(vCe+j)}')
    for j in range(8): a(f'v_mul_f32 {v(vCf+j)}, {v(vCf+j)}, {v(vCe+j)}')
    for j in range(4): a(f'v_cvt_pk_bf16_f32 {v(vC+j)}, {v(vCf+2*j)}, {v(vCf+2*j+1)}')
    a(f'ds_write_b128 {v(vL16)}, {v(vC,4)} offset:{L_SILU}')
    vMB = V.alloc(56, 2); vMA = V.alloc(16, 2); vMD = V.alloc(4, 2)
    a(f'''v_lshlrev_b32 {v(vt0)}, 4, {v(vGp)}
    v_lshlrev_b32 {v(vt1)}, 3, {v(vI)}
    v_lshl_add_u32 {v(vt1)}, {v(vGp)}, 8, {v(vt1)}''')
    for j in range(14): a(f'ds_read_b128 {v(vMB+4*j,4)}, {v(vt0)} offset:{L_SILU + 64*j}')
    def modrd(j):
        a(f'ds_read_b64_tr_b16 {v(vMA+4*(j%4),2)}, {v(vt1)} offset:{L_WM + 1024*j}', r=[f'wm{j}'])
        a(f'ds_read_b64_tr_b16 {v(vMA+4*(j%4)+2,2)}, {v(vt1)} offset:{L_WM + 1024*j + 128}')
    for j in range(3): modrd(j)
    for j in range(14):
        if j + 3 < 14: modrd(j + 3)
        a(f'v_mfma_f32_16x16x32_bf16 {v(vMD,4)}, {v(vMA+4*(j%4),4)}, {v(vMB+4*j,4)}, {v(vMD,4) if j else 0}')
    a(f'''s_lshl_b32 {s(t0)}, {s(sU)}, 6
    s_add_u32 {s(t0)}, {s(t0)}, {WS_MODG}
    v_mov_b32 {v(vC+1)}, {v(vTag)}
    v_mov_b32 {v(vC+3)}, {v(vTag)}
    v_cvt_pk_bf16_f32 {v(vC)}, {v(vMD)}, {v(vMD+1)}
    v_cvt_pk_bf16_f32 {v(vC+2)}, {v(vMD+2)}, {v(vMD+3)}
    s_mov_b32 exec_lo, 0x00010001
    s_mov_b32 exec_hi, 0x00010001
    buffer_store_dwordx4 {v(vC,4)}, {v(vLane)}, {SR(sWS)}, {s(t0)} offen sc1
    s_mov_b64 exec, -1''')
    a(f'{l3}:')
    V.rel(vCf, 8); V.rel(vCe, 8); V.rel(vMB, 56); V.rel(vMA, 16); V.rel(vMD, 4); V.rel(vWM)
    stamp('modpub')

    vS1 = V.alloc(8); vS2 = V.alloc(8); vXH = V.alloc(64, 2); vOne = V.alloc()
    a(f'v_mov_b32 {v(vOne)}, 0x3f803f80')
    for q in range(4):
        for i in range(8):
            a(f'v_dot2_f32_bf16 {v(vS1+i)}, {v(vXR+4*i+q)}, {v(vOne)}, {v(vS1+i) if q else 0}')
            a(f'v_dot2_f32_bf16 {v(vS2+i)}, {v(vXR+4*i+q)}, {v(vXR+4*i+q)}, {v(vS2+i) if q else 0}')
    for b in (vS1, vS2):
        for i in range(0, 8, 2): a(f'v_permlane32_swap_b32 {v(b+i)}, {v(b+i+1)}')
    for b in (vS1, vS2):
        for i in range(0, 8, 2): a(f'v_add_f32 {v(b+i)}, {v(b+i)}, {v(b+i+1)}')
    for b in (vS1, vS2):
        for i in (0, 4): a(f'v_permlane16_swap_b32 {v(b+i)}, {v(b+i+2)}')
    for b in (vS1, vS2):
        for i in (0, 4): a(f'v_add_f32 {v(b+i)}, {v(b+i)}, {v(b+i+2)}')
    for b in (vS1, vS2):
        a(f'v_add_f32_dpp {v(b+1)}, {v(b)}, {v(b)} row_ror:8 row_mask:0xf bank_mask:0x3')
    for b in (vS1, vS2):
        a(f'v_add_f32_dpp {v(b+1)}, {v(b+4)}, {v(b+4)} row_ror:8 row_mask:0xf bank_mask:0xc')
    for m_ in ('row_half_mirror', 'quad_perm:[1,0,3,2]', 'quad_perm:[2,3,0,1]'):
        for b in (vS1, vS2):
            a(f'v_add_f32_dpp {v(b+1)}, {v(b+1)}, {v(b+1)} {m_} row_mask:0xf bank_mask:0xf')
    a(f'''v_mul_f32 {v(vS1)}, {f32(1/448)}, {v(vS1+1)}
    v_mul_f32 {v(vS2)}, {f32(1/448)}, {v(vS2+1)}
    v_fma_f32 {v(vS2)}, -{v(vS1)}, {v(vS1)}, {v(vS2)}
    v_max_f32 {v(vS2)}, 0, {v(vS2)}
    v_add_f32 {v(vS2)}, {f32(1e-5)}, {v(vS2)}
    v_rsq_f32 {v(vS2)}, {v(vS2)}
    v_mul_f32 {v(vS1)}, -1.0, {v(vS1)}
    v_mul_f32 {v(vS1)}, {v(vS1)}, {v(vS2)}''')
    sST = S.alloc(16, 2)
    for i in range(8):
        ln = (i & 1) * 32 + ((i >> 1) & 1) * 16 + (i >> 2) * 8
        a(f'v_readlane_b32 {s(sST+2*i)}, {v(vS2)}, {ln}\nv_readlane_b32 {s(sST+2*i+1)}, {v(vS1)}, {ln}')
    for i in range(8):
        for q in range(4): unpack(vXH + 8*i + 2*q, vXR + 4*i + q)
        for q in range(4):
            r = v(vXH + 8*i + 2*q, 2)
            a(f'v_pk_fma_f32 {r}, {r}, {s(sST+2*i,2)}, {s(sST+2*i,2)} op_sel:[0,0,1] op_sel_hi:[1,0,1]')
    S.rel(sST, 16); V.rel(vS1, 8); V.rel(vS2, 8); V.rel(vOne); V.rel(vX56)
    stamp('ln1')

    l4 = a.lab('Lnosh2')
    a(f's_cmp_ge_u32 {s(sL)}, {s(sSHn)}\ns_cbranch_scc1 {l4}')
    a.need('shuf')
    for half in range(2):
        if half: a(f's_cmp_eq_u32 {s(sW)}, 3\ns_cbranch_scc1 {l4}')
        for ks in (2*half, 2*half + 1):
            for p in range(2):
                d = vXR + 4 * (2*ks + p)
                a(f'ds_read_b64_tr_b16 {v(d,2)}, {v(vSHr)} offset:{L_SHUF + ks*2048 + p*64}')
                a(f'ds_read_b64_tr_b16 {v(d+2,2)}, {v(vSHr)} offset:{L_SHUF + ks*2048 + p*64 + 512}')
        for ks in (2*half, 2*half + 1):
            a(f's_add_u32 {s(t0)}, {s(sDst)}, {s(sDP)}')
            a(f'buffer_store_dwordx4 {v(vXR+8*ks,4)}, {v(vSHd)}, {SR(sWS)}, {s(sDst)} offen sc1')
            a(f'buffer_store_dwordx4 {v(vXR+8*ks+4,4)}, {v(vSHd)}, {SR(sWS)}, {s(t0)} offen sc1')
            a(f's_add_u32 {s(sDst)}, {s(sDst)}, {s(sDK)}')
    a(f'{l4}:')
    for x in (vSHs, vSHs3, vSHd, vSHr): V.rel(x)
    for x in (sSrc, sStr8, sDst, sDP, sDK, sSHn, sU, sUok): S.rel(x)
    a.need('kvw')
    a('s_waitcnt lgkmcnt(0)\ns_barrier')

    vWQ = V.alloc()
    a(f'''v_mul_u32_u24 {v(vt0)}, 4682, {v(vLane)}
    v_lshrrev_b32 {v(vt0)}, 16, {v(vt0)}
    v_mul_u32_u24 {v(vt1)}, 14, {v(vt0)}
    v_sub_u32 {v(vt1)}, {v(vLane)}, {v(vt1)}
    v_and_b32 {v(vt2)}, 1, {v(vt0)}
    v_lshrrev_b32 {v(vt0)}, 1, {v(vt0)}
    v_lshl_add_u32 {v(vt0)}, {v(vt2)}, 2, {v(vt0)}
    v_mul_u32_u24 {v(vt0)}, 896, {v(vt0)}
    v_lshl_add_u32 {v(vWQ)}, {v(vt1)}, 4, {v(vt0)}
    s_mul_i32 {s(t0)}, {s(sW)}, {112*896}
    s_mul_i32 {s(t1)}, {s(sHQ)}, 224
    s_add_u32 {s(t0)}, {s(t0)}, {s(t1)}
    s_mul_i32 {s(t1)}, {s(sW)}, {28*896}
    s_mov_b64 exec, {s(sM56,2)}''')
    for j in range(28):
        a(f's_add_u32 m0, {s(t1)}, {L_WQ + j*896}')
        if j: a(f's_add_u32 {s(t0)}, {s(t0)}, {(2 if j & 1 else 6)*896}')
        a(f'buffer_load_dwordx4 {v(vWQ)}, {SR(sWQ)}, {s(t0)} offen lds', w=['wq'])
    a('s_mov_b64 exec, -1')
    V.rel(vWQ)
    a(f'''v_and_b32 {v(vt0)}, 3, {v(vI)}
    v_lshlrev_b32 {v(vt0)}, 3, {v(vt0)}
    s_cmp_lt_u32 {s(sW)}, 2
    s_cselect_b64 vcc, -1, 0
    v_cndmask_b32 {v(vt0)}, {v(vSwp8)}, {v(vt0)}, vcc
    v_lshrrev_b32 {v(vt1)}, 2, {v(vI)}
    v_lshl_add_u32 {v(vt1)}, {v(vGp)}, 3, {v(vt1)}
    v_mul_u32_u24 {v(vt1)}, 56, {v(vt1)}
    s_lshr_b32 {s(t0)}, {s(sW)}, 1
    s_mul_i32 {s(t0)}, {s(t0)}, {26*1024}
    s_and_b32 {s(t1)}, {s(sW)}, 1
    s_lshl_b32 {s(t1)}, {s(t1)}, 5
    s_add_u32 {s(t0)}, {s(t0)}, {s(t1)}
    s_add_u32 {s(t0)}, {s(t0)}, {L_KVW}
    v_add3_u32 {v(vt0)}, {v(vt0)}, {v(vt1)}, {s(t0)}''')
    for j in range(14):
        a(f'ds_read_b64_tr_b16 {ac(4*j,2)}, {v(vt0)} offset:{1792*j}')
        a(f'ds_read_b64_tr_b16 {ac(4*j+2,2)}, {v(vt0)} offset:{1792*j + 224}')
    vHB = V.alloc(); vKVst = V.alloc(); vKown = V.alloc(); vPad = V.alloc(2, 2); vMod = V.alloc()
    sPadM = S.alloc(2, 2)
    a(f'''v_and_b32 {v(vt0)}, 7, {v(vI)}
    s_lshl_b32 {s(t0)}, {s(sHQ)}, 3
    v_add_u32 {v(vt1)}, {s(t0)}, {v(vt0)}
    v_mul_u32_u24 {v(vt1)}, 912, {v(vt1)}
    v_lshl_add_u32 {v(vt1)}, {v(vGp)}, 4, {v(vt1)}
    v_add_u32 {v(vHB)}, {L_H1}, {v(vt1)}
    v_lshlrev_b32 {v(vMod)}, 5, {v(vLane)}
    s_and_b32 {s(t2)}, {s(sW)}, 1
    s_lshr_b32 {s(t3)}, {s(sHQ)}, 1
    s_and_b32 {s(t4)}, {s(sHQ)}, 1''')
    lv = a.lab('Lvaddr'); le = a.lab('Laddr_e')
    a(f'''s_cmp_ge_u32 {s(sW)}, 2
    s_cbranch_scc1 {lv}''')
    a(f'''v_lshrrev_b32 {v(vt1)}, 1, {v(vGp)}
    v_and_b32 {v(vt2)}, 1, {v(vGp)}
    v_lshlrev_b32 {v(vt2)}, 3, {v(vt2)}
    v_lshl_add_u32 {v(vKown)}, {v(vt1)}, 7, {v(vt2)}
    v_lshl_add_u32 {v(vKown)}, {v(vt0)}, 4, {v(vKown)}
    s_lshl_b32 {s(t0)}, {s(t2)}, 8
    s_add_u32 {s(t0)}, {s(t0)}, {L_KOWN}
    v_add_u32 {v(vKown)}, {s(t0)}, {v(vKown)}
    v_lshl_add_u32 {v(vKVst)}, {v(vt1)}, 9, {v(vt2)}
    v_and_b32 {v(vt1)}, 3, {v(vI)}
    v_lshl_add_u32 {v(vKVst)}, {v(vt1)}, 4, {v(vKVst)}
    v_and_b32 {v(vt1)}, 4, {v(vI)}
    v_lshl_add_u32 {v(vKVst)}, {v(vt1)}, 5, {v(vKVst)}
    s_lshl_b32 {s(t0)}, {s(t2)}, 10
    s_lshl_b32 {s(t1)}, {s(t3)}, 8
    s_add_u32 {s(t0)}, {s(t0)}, {s(t1)}
    s_lshl_b32 {s(t1)}, {s(t4)}, 6
    s_add_u32 {s(t0)}, {s(t0)}, {s(t1)}
    v_add_u32 {v(vKVst)}, {s(t0)}, {v(vKVst)}
    v_mov_b32 {v(vPad)}, 0x3f803f80
    v_mov_b32 {v(vPad+1)}, 0x00003f80
    s_mov_b32 {s(sPadM)}, 0
    s_mov_b32 {s(sPadM+1)}, 0xffff0000
    s_mov_b32 exec_lo, 0xff00ff00
    s_mov_b32 exec_hi, 0xff00ff00
    v_mov_b32 {v(vKVst)}, {OOB}
    s_mov_b64 exec, -1
    s_branch {le}
    {lv}:''')
    a(f'''v_lshlrev_b32 {v(vKVst)}, 3, {v(vGp)}
    v_lshl_add_u32 {v(vKVst)}, {v(vI)}, 4, {v(vKVst)}
    s_lshl_b32 {s(t0)}, {s(sHQ)}, 9
    s_lshl_b32 {s(t1)}, {s(t2)}, 8
    s_add_u32 {s(t0)}, {s(t0)}, {s(t1)}
    s_add_u32 {s(t0)}, {s(t0)}, 2048
    v_add_u32 {v(vKVst)}, {s(t0)}, {v(vKVst)}
    v_mov_b32 {v(vKown)}, {L_KOWN + 512}
    v_mov_b32 {v(vPad)}, 0
    v_mov_b32 {v(vPad+1)}, 0
    s_mov_b32 exec_lo, 0x10001000
    s_mov_b32 exec_hi, 0x10001000
    v_mov_b32 {v(vPad)}, 0x3f803f80
    v_mov_b32 {v(vPad+1)}, 0x3f803f80
    s_mov_b32 {s(sPadM)}, 0xf000f000
    s_mov_b32 {s(sPadM+1)}, 0xf000f000
    s_mov_b32 exec_lo, 0
    s_mov_b32 exec_hi, -1
    v_mov_b32 {v(vKVst)}, {OOB}
    s_mov_b64 exec, -1
    {le}:''')
    a(f'''s_cmp_eq_u32 {s(t2)}, 0
    s_cselect_b64 {s(sPadM,2)}, 0, {s(sPadM,2)}''')
    for i in range(8): a(f's_mul_i32 {s(sXR+i)}, {s(sXR+i)}, 912')
    vHW = V.alloc(8)
    for i in range(8): a(f'v_add_u32 {v(vHW+i)}, {s(sXR+i)}, {v(vL16)}')
    for i in range(8): a(f'v_add_u32 {v(vHW+i)}, {L_H1}, {v(vHW+i)}')
    S.rel(sXR, 8)
    sKVo = S.alloc(); sFl = S.alloc()
    a(f'''s_lshl_b32 {s(sKVo)}, {s(sT)}, 12
    s_add_u32 {s(sKVo)}, {s(sKVo)}, {WS_KV}
    s_lshl_b32 {s(sFl)}, {s(sL)}, 2
    s_add_u32 {s(sFl)}, {s(sFl)}, {s(sW)}
    s_lshl_b32 {s(sFl)}, {s(sFl)}, 2''')
    a('s_waitcnt lgkmcnt(0)\ns_barrier')
    stamp('prepoll')

    vG = V.alloc(16, 2); vSA = V.alloc(8, 2); vCA = V.alloc(8, 2)
    a(f's_mov_b64 exec, {s(sM56,2)}\ns_mov_b32 {s(t0)}, {WS_MODG}')
    def ld():
        for j, off in enumerate((0, 16, 1792, 1808)):
            a(f'buffer_load_dwordx4 {v(vG+4*j,4)}, {v(vMod)}, {SR(sWS)}, {s(t0)} offen offset:{off} sc1')
    poll(ld, lambda: tagcheck([vG + 2*j + 1 for j in range(8)], vt0))
    stamp('modrcv')
    for j in range(4): unpack(vCA + 2*j, vG + 8 + 2*j)
    for j in range(4): a(f'v_pk_add_f32 {v(vCA+2*j,2)}, {v(vCA+2*j,2)}, 1.0 op_sel_hi:[1,0]')
    for j in range(4): unpack(vSA + 2*j, vG + 2*j)
    def modrow(i):
        for q in range(4):
            r = v(vXH + 8*i + 2*q, 2)
            a(f'v_pk_fma_f32 {r}, {r}, {v(vCA+2*q,2)}, {v(vSA+2*q,2)}')
        for q in range(4): a(f'v_cvt_pk_bf16_f32 {v(vXR+4*i+q)}, {v(vXH+8*i+2*q)}, {v(vXH+8*i+2*q+1)}')
        a(f'ds_write_b128 {v(vHW+i)}, {v(vXR+4*i,4)}')
    modrow(0); modrow(1)
    a('s_mov_b64 exec, -1\ns_waitcnt lgkmcnt(0)\ns_barrier')
    vHF = V.alloc(56, 2); vD = V.alloc(4, 2)
    for j in range(14): a(f'ds_read_b128 {v(vHF+4*j,4)}, {v(vHB)} offset:{64*j}')
    lv = a.lab('Lvmm'); le = a.lab('Lmm_e')
    a(f's_cmp_ge_u32 {s(sW)}, 2\ns_cbranch_scc1 {lv}')
    for j in range(14): a(f'v_mfma_f32_16x16x32_bf16 {v(vD,4)}, {ac(4*j,4)}, {v(vHF+4*j,4)}, {v(vD,4) if j else 0}')
    a(f's_branch {le}\n{lv}:')
    for j in range(14): a(f'v_mfma_f32_16x16x32_bf16 {v(vD,4)}, {v(vHF+4*j,4)}, {ac(4*j,4)}, {v(vD,4) if j else 0}')
    a(f'{le}:')
    a(f'''v_cvt_pk_bf16_f32 {v(vG)}, {v(vD)}, {v(vD+1)}
    v_cvt_pk_bf16_f32 {v(vG+1)}, {v(vD+2)}, {v(vD+3)}
    v_cndmask_b32 {v(vG)}, {v(vG)}, {v(vPad)}, {s(sPadM,2)}
    v_cndmask_b32 {v(vG+1)}, {v(vG+1)}, {v(vPad+1)}, {s(sPadM,2)}
    buffer_store_dwordx2 {v(vG,2)}, {v(vKVst)}, {SR(sWS)}, {s(sKVo)} offen sc1
    ds_write_b64 {v(vKown)}, {v(vG,2)}''')
    stamp('kvst')
    a(f's_mov_b64 exec, {s(sM56,2)}')
    for i in range(2, 8): modrow(i)
    a('s_mov_b64 exec, -1')
    V.rel(vHF, 56); V.rel(vD, 4); V.rel(vHB); V.rel(vKVst); V.rel(vKown); V.rel(vPad, 2); V.rel(vMod); V.rel(vHW, 8)
    V.rel(vG, 16); V.rel(vSA, 8); V.rel(vCA, 8); V.rel(vXH, 64); V.rel(vXR, 32); V.rel(vC, 4); S.rel(sPadM, 2)
    a(f'''s_or_b32 {s(t1)}, {s(sTAG)}, {s(sXCC)}
    v_mov_b32 {v(vt3)}, {s(t1)}
    s_add_u32 {s(t0)}, {s(sFl)}, {WS_FKV}
    s_waitcnt vmcnt(0)
    s_mov_b64 exec, 1
    buffer_store_dword {v(vt3)}, off, {SR(sWS)}, {s(t0)} sc1
    s_mov_b64 exec, -1''')
    vQA = V.alloc(2); vQB = V.alloc()
    a(f'''v_lshrrev_b32 {v(vt0)}, 2, {v(vI)}
    v_lshrrev_b32 {v(vt1)}, 1, {v(vGp)}
    v_lshl_add_u32 {v(vt0)}, {v(vt1)}, 2, {v(vt0)}
    v_mul_u32_u24 {v(vt0)}, 448, {v(vt0)}
    v_and_b32 {v(vt2)}, 1, {v(vGp)}
    v_lshl_add_u32 {v(vt0)}, {v(vt2)}, 5, {v(vt0)}
    s_mul_i32 {s(t0)}, {s(sW)}, 56
    v_add3_u32 {v(vQA)}, {v(vt0)}, {v(vSwp8)}, {s(t0)}
    v_add_u32 {v(vQA+1)}, {14*3584}, {v(vQA)}
    v_and_b32 {v(vt0)}, 31, {v(vLane)}
    v_mul_u32_u24 {v(vt0)}, 912, {v(vt0)}
    v_lshl_add_u32 {v(vt0)}, {v(vt1)}, 4, {v(vt0)}
    v_add_u32 {v(vQB)}, {L_H1}, {v(vt0)}''')
    a('s_waitcnt lgkmcnt(0)\ns_barrier')
    NB = 4
    vA = V.alloc(4*NB, 2); vBf = V.alloc(4*NB, 2); vQD = V.alloc(16, 2)
    def qrd(k):
        b = vQA + (k // 14); off = L_WQ + (k % 14) * 3584
        a(f'ds_read_b64_tr_b16 {v(vA+4*(k%NB),2)}, {v(b)} offset:{off}')
        a(f'ds_read_b64_tr_b16 {v(vA+4*(k%NB)+2,2)}, {v(b)} offset:{off+224}')
        a(f'ds_read_b128 {v(vBf+4*(k%NB),4)}, {v(vQB)} offset:{32*k}')
    for k in range(NB - 1): qrd(k)
    for k in range(28):
        if k + NB - 1 < 28: qrd(k + NB - 1)
        a(f'v_mfma_f32_32x32x16_bf16 {v(vQD,16)}, {v(vA+4*(k%NB),4)}, {v(vBf+4*(k%NB),4)}, {v(vQD,16) if k else 0}')
    a(f'''v_and_b32 {v(vt0)}, 7, {v(vLane)}
    v_lshrrev_b32 {v(vt1)}, 5, {v(vLane)}
    v_lshlrev_b32 {v(vt0)}, 4, {v(vt0)}
    v_lshl_add_u32 {v(vt0)}, {v(vt1)}, 7, {v(vt0)}
    v_add_u32 {v(vt0)}, {L_KOWN}, {v(vt0)}''')
    vKo = V.alloc(8, 2); vQp = V.alloc(8, 2)
    a(f'ds_read_b128 {v(vKo,4)}, {v(vt0)}\nds_read_b128 {v(vKo+4,4)}, {v(vt0)} offset:256')
    QS = 1.4426950408889634 * 28 ** -0.5
    a(f's_mov_b32 {s(t2)}, {f32(QS)}')
    for r in range(16): a(f'v_mul_f32 {v(vQD+r)}, {s(t2)}, {v(vQD+r)}')
    for r in range(8): a(f'v_cvt_pk_bf16_f32 {v(vQp+r)}, {v(vQD+2*r)}, {v(vQD+2*r+1)}')
    a(f'''s_mov_b32 exec_lo, 0
    v_mov_b32 {v(vQp+6)}, 0
    v_mov_b32 {v(vQp+7)}, 0
    s_mov_b64 exec, -1''')
    a(f'v_mfma_f32_32x32x16_bf16 {v(vQD,16)}, {v(vKo,4)}, {v(vQp,4)}, 0')
    a(f'v_mfma_f32_32x32x16_bf16 {v(vQD,16)}, {v(vKo+4,4)}, {v(vQp+4,4)}, {v(vQD,16)}')
    a(f'''s_lshl_b32 {s(t0)}, {s(sW)}, 11
    s_add_u32 {s(t0)}, {s(t0)}, {L_QX}
    v_add_u32 {v(vt2)}, {s(t0)}, {v(vL16)}
    ds_write_b128 {v(vt2)}, {v(vQp,4)}
    v_max3_f32 {v(vt0)}, {v(vQD)}, {v(vQD+1)}, {v(vQD+2)}
    v_max_f32 {v(vt0)}, {v(vt0)}, {v(vQD+3)}
    v_mov_b32 {v(vt1)}, {v(vt0)}
    v_permlane32_swap_b32 {v(vt0)}, {v(vt1)}
    v_max_f32 {v(vt0)}, {v(vt0)}, {v(vt1)}
    v_sub_f32 {v(vt0)}, {f32(200.0 if FORCE_SLOW else -40.0)}, {v(vt0)}
    s_mov_b32 exec_lo, 0
    v_cvt_pk_bf16_f32 {v(vQp+6)}, {v(vt0)}, 0
    s_mov_b64 exec, -1
    ds_write_b128 {v(vt2)}, {v(vQp+4,4)} offset:1024''')
    V.rel(vA, 4*NB); V.rel(vBf, 4*NB); V.rel(vQD, 16); V.rel(vKo, 8); V.rel(vQp, 8); V.rel(vQA, 2); V.rel(vQB); V.rel(vSwp8)
    stamp('qdone')

    NKV = 4
    vQ = V.alloc(32, 2); vO = V.alloc(64, 2); vS = V.alloc(32, 2); vP = V.alloc(8, 2); vKV = V.alloc(16*NKV, 2)
    vRB = V.alloc(3); vWOa = V.alloc()
    sKVb = S.alloc(); sWOo = S.alloc(); sWDo = S.alloc(); sW1o = S.alloc(); sW1m = S.alloc(); sTH = S.alloc(); sNB = S.alloc()
    a(f'''s_lshl_b32 {s(sKVb)}, {s(sW)}, 16
    s_add_u32 {s(sKVb)}, {s(sKVb)}, {WS_KV}
    s_lshl_b32 {s(t0)}, {s(sW)}, 10
    s_add_u32 {s(t0)}, {s(t0)}, {WS_FKV}''')
    a(f'''s_mul_i32 {s(sWOo)}, {s(sHQ)}, 7
    s_lshl_b32 {s(t1)}, {s(sW)}, 1
    s_add_u32 {s(sWOo)}, {s(sWOo)}, {s(t1)}
    s_lshl_b32 {s(sWOo)}, {s(sWOo)}, 14
    s_add_u32 {s(sWOo)}, {s(sWOo)}, {WS_WO}
    v_and_b32 {v(vt0)}, 1, {v(vGp)}
    v_lshrrev_b32 {v(vt1)}, 1, {v(vGp)}
    v_lshlrev_b32 {v(vt0)}, 14, {v(vt0)}
    v_lshl_add_u32 {v(vt0)}, {v(vt1)}, 8, {v(vt0)}
    v_lshl_add_u32 {v(vWOa)}, {v(vI)}, 4, {v(vt0)}
    s_cmp_ge_u32 {s(sM)}, 7
    s_cselect_b32 {s(sTH)}, 1, 0
    s_cselect_b32 {s(t1)}, 7, 0
    s_sub_u32 {s(sNB)}, {s(sM)}, {s(t1)}
    s_mul_i32 {s(sWDo)}, {s(sNB)}, 112
    s_mul_i32 {s(t1)}, {s(sW)}, 28
    s_add_u32 {s(sWDo)}, {s(sWDo)}, {s(t1)}
    s_lshl_b32 {s(sWDo)}, {s(sWDo)}, 11
    s_add_u32 {s(sWDo)}, {s(sWDo)}, {WS_WD}
    s_cmp_ge_u32 {s(sM)}, 14
    s_cselect_b32 {s(sWDo)}, {OOB}, {s(sWDo)}
    s_mul_i32 {s(sW1m)}, {s(sW)}, 7168
    s_mul_i32 {s(sW1o)}, {s(sM)}, {7*SLOT}
    s_add_u32 {s(sW1o)}, {s(sW1o)}, {s(sW1m)}
    s_add_u32 {s(sW1o)}, {s(sW1o)}, {WS_W1}''')
    a(f'''s_and_b32 {s(t1)}, {s(sW)}, 1
    s_lshl_b32 {s(t1)}, {s(t1)}, 10
    v_add_u32 {v(vWDa+1)}, {s(t1)}, {v(vL16)}
    s_xor_b32 {s(t1)}, {s(t1)}, 1024
    v_add_u32 {v(vWDa)}, {s(t1)}, {v(vL16)}''')
    for i in range(3):
        a(f'''s_add_u32 {s(t1)}, {s(sW)}, {1+i}
        s_and_b32 {s(t1)}, {s(t1)}, 3
        s_mul_i32 {s(t1)}, {s(t1)}, 12288
        s_add_u32 {s(t1)}, {s(t1)}, {L_RB + i*4096}
        v_add_u32 {v(vRB+i)}, {s(t1)}, {v(vL16)}''')
    poll(lambda: a(f'buffer_load_dwordx4 {v(vS,4)}, {v(vL16)}, {SR(sWS)}, {s(t0)} offen sc1'),
         lambda: tagcheck([vS + j for j in range(4)], vt0, mask=True))
    stamp('kvrcv')
    def kvload(kt):
        b = vKV + 16 * (kt % NKV)
        r = []
        if kt: r.append(f's_add_u32 {s(sKVb)}, {s(sKVb)}, 4096')
        for j in range(4): r.append(f'buffer_load_dwordx4 {v(b+4*j,4)}, {v(vL16)}, {SR(sWS)}, {s(sKVb)} offen offset:{1024*j} sc1')
        return r
    for kt in range(NKV - 1):
        for x in kvload(kt): a(x)
    ll = a.lab('Lnoloc')
    a(f'''s_lshr_b32 {s(t1)}, {s(sG)}, 2
    s_cmp_lg_u32 {s(t1)}, {s(sW)}
    s_cbranch_scc1 {ll}
    s_or_b32 {s(t1)}, {s(sTAG)}, {s(sXCC)}
    v_cmp_ne_u32 vcc, {s(t1)}, {v(vS)}
    s_and_b32 {s(t1)}, {s(sG)}, 3
    s_lshl_b32 {s(t1)}, {s(t1)}, 4
    s_lshr_b64 vcc, vcc, {s(t1)}
    s_and_b32 {s(t1)}, vcc_lo, 0xffff
    s_cselect_b32 {s(t1)}, 0, {0 if FORCE_NONLOCAL else 1}
    v_mov_b32 {v(vt0)}, {s(t1)}
    v_mov_b32 {v(vt1)}, {L_LOC}
    ds_write_b32 {v(vt1)}, {v(vt0)}
    {ll}:''')
    a('s_waitcnt lgkmcnt(0)\ns_barrier')
    for i in range(4):
        a(f'''s_add_u32 {s(t1)}, {s(sW)}, {1+i}
        s_and_b32 {s(t1)}, {s(t1)}, 3
        s_lshl_b32 {s(t1)}, {s(t1)}, 11
        s_add_u32 {s(t1)}, {s(t1)}, {L_QX}
        v_add_u32 {v(vt2)}, {s(t1)}, {v(vL16)}
        ds_read_b128 {v(vQ+8*i,4)}, {v(vt2)}
        ds_read_b128 {v(vQ+8*i+4,4)}, {v(vt2)} offset:1024''')
    a(f'v_mov_b32 {v(vt1)}, {L_LOC}\nds_read_b32 {v(vt0)}, {v(vt1)}\nv_readfirstlane_b32 {s(sLOC)}, {v(vt0)}')
    a('s_waitcnt lgkmcnt(0)\ns_barrier')

    side = []
    for j in range(32):
        g = []
        if j and j % 8 == 0: g.append(f's_add_u32 {s(sWOo)}, {s(sWOo)}, 4096')
        g.append(f'buffer_load_dwordx4 {ac(4*j,4)}, {v(vWOa)}, {SR(sWS)}, {s(sWOo)} offen offset:{(j%8)*512} sc1')
        side.append(g)
    def w1dma(tile, slot):
        r = []
        for j in range(7):
            g = []
            if j % 4 == 0:
                g.append(f's_add_u32 {s(t4)}, {s(sW1o)}, {tile*SLOT + j*1024}')
                g.append(f's_add_u32 m0, {s(sW1m)}, {slot*SLOT + j*1024}')
                g.append('@gap')
            g.append((f'buffer_load_dwordx4 {v(vL16)}, {SR(sWS)}, {s(t4)} offen offset:{(j%4)*1024} sc1 lds', f'w1_{tile}'))
            r.append(g)
        return r
    for tile in range(4): side += w1dma(tile, tile)
    def wdreg(k, b): return (128 + 8*k + 4*b) if k < 16 else (8*(k-16) + 4*b)
    def wdload(k):
        r = []
        for b in range(2):
            g = []
            if k and k % 2 == 0 and b == 0: g.append(f's_add_u32 {s(sWDo)}, {s(sWDo)}, 4096')
            g.append(f'buffer_load_dwordx4 {ac(wdreg(k,b),4)}, {v(vWDa+b)}, {SR(sWS)}, {s(sWDo)} offen offset:{(k%2)*2048} sc1')
            r.append(g)
        return r
    for k in range(16): side += wdload(k)
    def emit_group(g):
        for x in g:
            if x == '@gap': continue
            if isinstance(x, tuple): a(x[0], w=[x[1]])
            else: a(x)

    def QK(n, c):
        kt, i = divmod(n, 4); b = vKV + 16 * (kt % NKV); d = v(vS + 16 * (n & 1), 16)
        return f'v_mfma_f32_32x32x16_bf16 {d}, {v(b+4*c,4)}, {v(vQ+8*i+4*c,4)}, {d if c else 0}'
    def PV(n, c):
        kt, i = divmod(n, 4); b = vKV + 16 * (kt % NKV); d = v(vO + 16 * i, 16)
        return f'v_mfma_f32_32x32x16_bf16 {d}, {v(b+8+4*c,4)}, {v(vP+4*c,4)}, {d if (kt or c) else 0}'
    def EX(n, r): return f'v_exp_f32 {v(vS+16*(n&1)+r)}, {v(vS+16*(n&1)+r)}'
    def CV(n, r): return f'v_cvt_pk_bf16_f32 {v(vP+r)}, {v(vS+16*(n&1)+2*r)}, {v(vS+16*(n&1)+2*r+1)}'
    def rbwrite(i):
        return [f'ds_write_b128 {v(vRB+i)}, {v(vO+16*i+4*q,4)} offset:{1024*q}' for q in range(4)]
    a(QK(0, 0)); a(QK(0, 1))
    N = 64
    sidx = 0
    first_side = 4; last_side = 58
    for n in range(N):
        kt, i = divmod(n, 4)
        extra = []
        if i >= 1 and kt + NKV - 1 < 16:
            l_ = kvload(kt + NKV - 1)
            if i == 1: extra.append(l_[:3])
            elif i == 2: extra.append(l_[3:4])
            else: extra.append(l_[4:5])
        if n >= first_side:
            want = min(len(side), -(-(n - first_side + 1) * len(side) // (last_side - first_side + 1)))
            while sidx < want: extra.append(side[sidx]); sidx += 1
        if n >= 62: extra.append(rbwrite(n - 62))
        pos = {0: [], 1: [], 2: [], 3: []}
        for j, g in enumerate(extra): pos[(j + 1) % 4 if n < 62 else 2].append(g)
        a(EX(n, 0))
        if n: a(CV(n - 1, 7))
        a(EX(n, 1)); a(EX(n, 2))
        if n: a(PV(n - 1, 1))
        for g in pos[0]: emit_group(g)
        a(EX(n, 3)); a(CV(n, 0)); a(EX(n, 4)); a(CV(n, 1)); a(EX(n, 5))
        if n + 1 < N: a(QK(n + 1, 0))
        for g in pos[1]: emit_group(g)
        a(EX(n, 6)); a(CV(n, 2)); a(EX(n, 7)); a(EX(n, 8)); a(CV(n, 3))
        if n + 1 < N: a(QK(n + 1, 1))
        for g in pos[2]: emit_group(g)
        a(EX(n, 9)); a(EX(n, 10)); a(CV(n, 4)); a(EX(n, 11)); a(EX(n, 12)); a(CV(n, 5))
        a(PV(n, 0))
        for g in pos[3]: emit_group(g)
        a(EX(n, 13)); a(EX(n, 14)); a(CV(n, 6)); a(EX(n, 15))
    assert sidx == len(side)
    a(CV(N - 1, 7))
    for x in rbwrite(2)[:2]: a(x)
    a(PV(N - 1, 1))
    for x in rbwrite(2)[2:]: a(x)
    stamp('attn')
    a(f'''s_mul_i32 {s(t1)}, {s(sW)}, 12288
    s_add_u32 {s(t1)}, {s(t1)}, {L_RB}
    v_add_u32 {v(vRr)}, {s(t1)}, {v(vL16)}''')
    a('s_waitcnt lgkmcnt(0)\ns_barrier')
    for i in range(3):
        for q in range(4): a(f'ds_read_b128 {v(vO+16*i+4*q,4)}, {v(vRr)} offset:{4096*i + 1024*q}')
    vOo = vO + 48
    for i in range(3):
        for r in range(0, 16, 2): a(f'v_pk_add_f32 {v(vOo+r,2)}, {v(vOo+r,2)}, {v(vO+16*i+r,2)}')
    lslow = a.lab('Lslow'); lnorm = a.lab('Lnorm')
    a(f'''v_mov_b32 {v(vt0)}, {v(vOo+12)}
    v_mov_b32 {v(vt1)}, {v(vOo+12)}
    v_permlane32_swap_b32 {v(vt0)}, {v(vt1)}
    v_subrev_u32 {v(vt0)}, {(127-60) << 23}, {v(vt1)}
    v_cmp_le_u32 vcc, {120 << 23}, {v(vt0)}
    s_cbranch_vccnz {lslow}
    {lnorm}:
    v_rcp_f32 {v(vt0)}, {v(vt1)}''')
    sOo = S.alloc()
    a(f'''s_lshl_b32 {s(sOo)}, {s(sT)}, 15
    s_lshl_b32 {s(t1)}, {s(sW)}, 11
    s_add_u32 {s(sOo)}, {s(sOo)}, {s(t1)}
    s_add_u32 {s(sOo)}, {s(sOo)}, {WS_O}
    s_lshl_b32 {s(t1)}, {s(sHQ)}, 13
    s_add_u32 {s(t0)}, {s(sOo)}, {s(t1)}
    s_lshl_b32 {s(t1)}, {s(sHQ)}, 11
    v_add_u32 {v(vt2)}, {s(t1)}, {v(vRr)}''')
    for r in range(16): a(f'v_mul_f32 {v(vOo+r)}, {v(vOo+r)}, {v(vt0)}')
    for r in range(8): a(f'v_cvt_pk_bf16_f32 {v(vP+r)}, {v(vOo+2*r)}, {v(vOo+2*r+1)}')
    a(f'''buffer_store_dwordx4 {v(vP,4)}, {v(vL16)}, {SR(sWS)}, {s(t0)} offen
    buffer_store_dwordx4 {v(vP+4,4)}, {v(vL16)}, {SR(sWS)}, {s(t0)} offen offset:1024
    ds_write_b128 {v(vt2)}, {v(vP,4)}
    ds_write_b128 {v(vt2)}, {v(vP+4,4)} offset:1024
    s_add_u32 {s(t0)}, {s(sFl)}, {WS_FO}''')
    signal(t0, True)
    def slowpath(vOo=vOo, vQ=vQ, vS=vS, vP=vP, vKV=vKV):
        qo = vQ + 24; mx = vt0
        a(f'''{lslow}:
        s_mov_b32 exec_lo, 0
        v_mov_b32 {v(qo+6)}, 0
        v_mov_b32 {v(qo+7)}, 0
        s_mov_b64 exec, -1
        v_mov_b32 {v(mx)}, 0xff800000
        s_mov_b32 {s(t0)}, {WS_KV}''')
        lp = a.lab('Lsl1')
        a(f'''{lp}:
        buffer_load_dwordx4 {v(vKV,4)}, {v(vL16)}, {SR(sWS)}, {s(t0)} offen sc1
        buffer_load_dwordx4 {v(vKV+4,4)}, {v(vL16)}, {SR(sWS)}, {s(t0)} offen offset:1024 sc1
        v_mfma_f32_32x32x16_bf16 {v(vS,16)}, {v(vKV,4)}, {v(qo,4)}, 0
        v_mfma_f32_32x32x16_bf16 {v(vS,16)}, {v(vKV+4,4)}, {v(qo+4,4)}, {v(vS,16)}''')
        for r in range(0, 16, 2): a(f'v_max3_f32 {v(mx)}, {v(mx)}, {v(vS+r)}, {v(vS+r+1)}')
        a(f'''s_add_u32 {s(t0)}, {s(t0)}, 4096
        s_cmp_lt_u32 {s(t0)}, {WS_KV + 64*4096}
        s_cbranch_scc1 {lp}
        v_mov_b32 {v(vt1)}, {v(mx)}
        v_permlane32_swap_b32 {v(mx)}, {v(vt1)}
        v_max_f32 {v(mx)}, {v(mx)}, {v(vt1)}
        v_sub_f32 {v(mx)}, 0, {v(mx)}
        v_and_b32 {v(vt1)}, 0xffff0000, {v(mx)}
        v_sub_f32 {v(vt2)}, {v(mx)}, {v(vt1)}
        v_and_b32 {v(vt3)}, 0xffff0000, {v(vt2)}
        v_sub_f32 {v(vt2)}, {v(vt2)}, {v(vt3)}
        s_mov_b32 exec_lo, 0
        v_cvt_pk_bf16_f32 {v(qo+6)}, {v(vt1)}, {v(vt3)}
        v_cvt_pk_bf16_f32 {v(qo+7)}, {v(vt2)}, 0
        s_mov_b64 exec, -1''')
        for r in range(16): a(f'v_mov_b32 {v(vOo+r)}, 0')
        lp = a.lab('Lsl2')
        a(f's_mov_b32 {s(t0)}, {WS_KV}\n{lp}:')
        for j in range(4): a(f'buffer_load_dwordx4 {v(vKV+4*j,4)}, {v(vL16)}, {SR(sWS)}, {s(t0)} offen offset:{1024*j} sc1')
        a(f'''v_mfma_f32_32x32x16_bf16 {v(vS,16)}, {v(vKV,4)}, {v(qo,4)}, 0
        v_mfma_f32_32x32x16_bf16 {v(vS,16)}, {v(vKV+4,4)}, {v(qo+4,4)}, {v(vS,16)}''')
        for r in range(16): a(EX(0, r))
        for r in range(8): a(CV(0, r))
        a(f'''v_mfma_f32_32x32x16_bf16 {v(vOo,16)}, {v(vKV+8,4)}, {v(vP,4)}, {v(vOo,16)}
        v_mfma_f32_32x32x16_bf16 {v(vOo,16)}, {v(vKV+12,4)}, {v(vP+4,4)}, {v(vOo,16)}
        s_add_u32 {s(t0)}, {s(t0)}, 4096
        s_cmp_lt_u32 {s(t0)}, {WS_KV + 64*4096}
        s_nop 7
        s_nop 7
        s_cbranch_scc1 {lp}
        v_mov_b32 {v(vt0)}, {v(vOo+12)}
        v_mov_b32 {v(vt1)}, {v(vOo+12)}
        v_permlane32_swap_b32 {v(vt0)}, {v(vt1)}
        s_branch {lnorm}''')
    V.rel(vQ, 32); V.rel(vO, 64); V.rel(vS, 32); V.rel(vP, 8); V.rel(vKV, 16*NKV); V.rel(vRB, 3); V.rel(vWOa)
    S.rel(sKVb); S.rel(sWOo); S.rel(sKVo)
    stamp('opub')

    def modvec_load(dst, vaddr, soff):
        for j, off in enumerate((0, 16, 64, 80)):
            a(f'buffer_load_dwordx4 {v(dst+4*j,4)}, {v(vaddr)}, {SR(sWS)}, {s(soff)} offen offset:{off} sc1')
    vMG = V.alloc(48, 2); vXr = V.alloc(8, 2)
    sCol = S.alloc()
    a(f'''v_lshrrev_b32 {v(vt0)}, 5, {v(vLane)}
    v_lshlrev_b32 {v(vHi32)}, 5, {v(vt0)}
    v_and_b32 {v(vt1)}, 31, {v(vLane)}
    v_mul_u32_u24 {v(vt1)}, 896, {v(vt1)}
    v_lshl_add_u32 {v(vRow)}, {v(vt0)}, 4, {v(vt1)}
    s_mul_i32 {s(sCol)}, {s(sHQ)}, 112
    s_lshl_b32 {s(t1)}, {s(sW)}, 5
    s_add_u32 {s(sCol)}, {s(sCol)}, {s(t1)}
    s_mul_i32 {s(t0)}, {s(sT)}, {32*896}
    s_lshl_b32 {s(t1)}, {s(sCol)}, 1
    s_add_u32 {s(t0)}, {s(t0)}, {s(t1)}
    buffer_load_dwordx4 {v(vXr,4)}, {v(vRow)}, {SR(sX)}, {s(t0)} offen
    buffer_load_dwordx4 {v(vXr+4,4)}, {v(vRow)}, {SR(sX)}, {s(t0)} offen offset:32
    s_lshl_b32 {s(t1)}, {s(sCol)}, 2
    s_add_u32 {s(t2)}, {s(t1)}, {WS_MODG + 4*896}
    s_add_u32 {s(t3)}, {s(t1)}, {WS_MODG + 4*1344}
    s_add_u32 {s(t1)}, {s(t1)}, {WS_MODG + 4*1792}''')
    def ld():
        modvec_load(vMG, vHi32, t2); modvec_load(vMG + 16, vHi32, t3); modvec_load(vMG + 32, vHi32, t1)
    poll(ld, lambda: tagcheck([vMG + 2*j + 1 for j in range(24)], vt0))
    a(f'''s_lshl_b32 {s(t0)}, {s(sT)}, 6
    s_lshl_b32 {s(t1)}, {s(sW)}, 2
    s_add_u32 {s(t0)}, {s(t0)}, {s(t1)}
    s_add_u32 {s(t0)}, {s(t0)}, {WS_FO}
    v_and_b32 {v(vt2)}, 3, {v(vLane)}
    v_lshlrev_b32 {v(vt2)}, 4, {v(vt2)}''')
    poll(lambda: a(f'buffer_load_dword {v(vt1)}, {v(vt2)}, {SR(sWS)}, {s(t0)} offen sc1'),
         lambda: a(f'v_cmp_ne_u32 vcc, {v(vTag)}, {v(vt1)}'))
    acquire()
    a(f's_mul_i32 {s(t2)}, {s(sW)}, 12288\ns_add_u32 {s(t2)}, {s(t2)}, {L_RB}')
    for j in range(1, 4):
        a(f'''s_add_u32 {s(t0)}, {s(sHQ)}, {j}
        s_and_b32 {s(t0)}, {s(t0)}, 3
        s_lshl_b32 {s(t1)}, {s(t0)}, 11
        s_add_u32 m0, {s(t1)}, {s(t2)}
        s_lshl_b32 {s(t0)}, {s(t0)}, 13
        s_add_u32 {s(t0)}, {s(t0)}, {s(sOo)}''')
        a(f'buffer_load_dwordx4 {v(vL16)}, {SR(sWS)}, {s(t0)} offen sc1 lds', w=['oimg'])
        a(f'buffer_load_dwordx4 {v(vL16)}, {SR(sWS)}, {s(t0)} offen offset:1024 sc1 lds', w=['oimg'])
    vGA = V.alloc(16, 2); vSB = V.alloc(16, 2); vCB = V.alloc(16, 2); vX2 = V.alloc(16, 2)
    for j in range(8):
        unpack(vGA + 2*j, vMG + 2*j); unpack(vSB + 2*j, vMG + 16 + 2*j); unpack(vCB + 2*j, vMG + 32 + 2*j); unpack(vX2 + 2*j, vXr + j)
    for j in range(8): a(f'v_pk_add_f32 {v(vCB+2*j,2)}, {v(vCB+2*j,2)}, 1.0 op_sel_hi:[1,0]')
    V.rel(vMG, 48)
    vOB = V.alloc()
    a(f'v_add_u32 {v(vOB)}, {L_RB}, {v(vL16)}')
    a.need('oimg')
    a('s_waitcnt lgkmcnt(0)\ns_barrier')
    stamp('orcv')
    NB = 6
    vBf = V.alloc(4*NB, 2); vAc = V.alloc(16, 2)
    def ord_(k): a(f'ds_read_b128 {v(vBf+4*(k%NB),4)}, {v(vOB)} offset:{((k>>1)&3)*12288 + (k>>3)*2048 + (k&1)*1024}')
    for k in range(NB - 1): ord_(k)
    for k in range(32):
        if k + NB - 1 < 32: ord_(k + NB - 1)
        a(f'v_mfma_f32_32x32x16_bf16 {v(vAc,16)}, {ac(4*k,4)}, {v(vBf+4*(k%NB),4)}, {v(vAc,16) if k else 0}')
    sFr = S.alloc(); sFr1 = S.alloc()
    a(f'''s_mul_i32 {s(sFr)}, {s(sT)}, 28672
    s_lshl_b32 {s(t1)}, {s(sCol)}, 6
    s_add_u32 {s(sFr)}, {s(sFr)}, {s(t1)}
    s_add_u32 {s(sFr1)}, {s(sFr)}, 1024
    s_cmp_eq_u32 {s(sW)}, 3
    s_cselect_b32 {s(sFr1)}, {OOB - WS_X2}, {s(sFr1)}
    s_add_u32 {s(t0)}, {s(sFr)}, {WS_X2}
    s_add_u32 {s(t1)}, {s(sFr1)}, {WS_X2}
    s_lshl_b32 {s(t2)}, {s(sW)}, 8
    s_add_u32 {s(t2)}, {s(t2)}, {L_RB + 3*12288 + 8192}
    v_lshl_add_u32 {v(vt2)}, {v(vLane)}, 2, {s(t2)}''')
    for r in range(0, 16, 2): a(f'v_pk_fma_f32 {v(vX2+r,2)}, {v(vAc+r,2)}, {v(vGA+r,2)}, {v(vX2+r,2)}')
    lz = a.lab('Lnz')
    a(f's_cmp_lg_u32 {s(sW)}, 3\ns_cbranch_scc1 {lz}')
    for r in range(8, 16): a(f'v_mov_b32 {v(vX2+r)}, 0')
    a(f'{lz}:')
    vq = vGA
    a(f'v_pk_add_f32 {v(vq,2)}, {v(vX2,2)}, {v(vX2+2,2)}\nv_pk_mul_f32 {v(vq+2,2)}, {v(vX2,2)}, {v(vX2,2)}')
    for r in range(2, 16, 2):
        if r > 2: a(f'v_pk_add_f32 {v(vq,2)}, {v(vq,2)}, {v(vX2+r,2)}')
        a(f'v_pk_fma_f32 {v(vq+2,2)}, {v(vX2+r,2)}, {v(vX2+r,2)}, {v(vq+2,2)}')
    a(f'''v_add_f32 {v(vq)}, {v(vq)}, {v(vq+1)}
    v_add_f32 {v(vq+2)}, {v(vq+2)}, {v(vq+3)}
    v_permlane32_swap_b32 {v(vq)}, {v(vq+2)}
    v_add_f32 {v(vq)}, {v(vq)}, {v(vq+2)}
    ds_write_b32 {v(vt2)}, {v(vq)}''')
    for r in range(8): a(f'v_cvt_pk_bf16_f32 {v(vXr+r)}, {v(vX2+2*r)}, {v(vX2+2*r+1)}')
    a(f'v_lshlrev_b32 {v(vt2)}, 2, {v(vLane)}\nv_add_u32 {v(vt2)}, {L_RB + 3*12288 + 8192}, {v(vt2)}')
    a('s_waitcnt lgkmcnt(0)\ns_barrier')
    for j in range(4): a(f'ds_read_b32 {v(vq+4+j)}, {v(vt2)} offset:{256*j}')
    a(f'''s_lshl_b32 {s(t2)}, {s(sT)}, 11
    s_add_u32 {s(t2)}, {s(t2)}, {WS_ST}
    s_lshr_b32 {s(t3)}, {s(sHQ)}, 1
    s_lshl_b32 {s(t3)}, {s(t3)}, 10
    s_and_b32 {s(t5)}, {s(sHQ)}, 1
    s_lshl_b32 {s(t5)}, {s(t5)}, 3
    s_add_u32 {s(t3)}, {s(t3)}, {s(t5)}
    s_add_u32 {s(t3)}, {s(t3)}, {s(t2)}
    s_cmp_eq_u32 {s(sW)}, 0
    s_cselect_b32 {s(t3)}, {s(t3)}, {OOB}
    v_mov_b32 {v(vq+1)}, {v(vTag)}
    v_add_f32 {v(vq+4)}, {v(vq+4)}, {v(vq+5)}
    v_add_f32 {v(vq+6)}, {v(vq+6)}, {v(vq+7)}
    v_add_f32 {v(vq)}, {v(vq+4)}, {v(vq+6)}''')
    ln = a.lab('Lst_nl'); le = a.lab('Lst_e')
    a(f'''s_cmp_eq_u32 {s(sLOC)}, 0
    s_cbranch_scc1 {ln}
    buffer_store_dwordx2 {v(vq,2)}, {v(vL16)}, {SR(sWS)}, {s(t3)} offen
    {le}:''')
    cold.append((ln, le, f'buffer_store_dwordx2 {v(vq,2)}, {v(vL16)}, {SR(sWS)}, {s(t3)} offen sc1'))
    a(f'''buffer_store_dwordx4 {v(vXr,4)}, {v(vL16)}, {SR(sWS)}, {s(t0)} offen
    buffer_store_dwordx4 {v(vXr+4,4)}, {v(vL16)}, {SR(sWS)}, {s(t1)} offen''')
    def ld():
        a(f'buffer_load_dwordx4 {v(vq+8,4)}, {v(vL16)}, {SR(sWS)}, {s(t2)} offen sc1')
        a(f'buffer_load_dwordx4 {v(vq+12,4)}, {v(vL16)}, {SR(sWS)}, {s(t2)} offen offset:1024 sc1')
    poll(ld, lambda: tagcheck([vq + 9, vq + 11, vq + 13, vq + 15], vt0))
    a(f'''v_add_f32 {v(vq+8)}, {v(vq+8)}, {v(vq+10)}
    v_add_f32 {v(vq+12)}, {v(vq+12)}, {v(vq+14)}
    v_add_f32 {v(vq+8)}, {v(vq+8)}, {v(vq+12)}
    v_mul_f32 {v(vq+8)}, {f32(1/448)}, {v(vq+8)}
    v_mov_b32 {v(vq+9)}, {v(vq+8)}
    v_permlane32_swap_b32 {v(vq+8)}, {v(vq+9)}
    v_fma_f32 {v(vq+9)}, -{v(vq+8)}, {v(vq+8)}, {v(vq+9)}
    v_max_f32 {v(vq+9)}, 0, {v(vq+9)}
    v_add_f32 {v(vq+9)}, {f32(1e-5)}, {v(vq+9)}
    v_rsq_f32 {v(vq+10)}, {v(vq+9)}
    s_add_u32 {s(t0)}, {s(sFr)}, {WS_H2}
    v_mul_f32 {v(vq+11)}, -{v(vq+8)}, {v(vq+10)}
    s_add_u32 {s(t1)}, {s(sFr1)}, {WS_H2}''')
    for r in range(0, 16, 2):
        a(f'v_pk_fma_f32 {v(vX2+r,2)}, {v(vX2+r,2)}, {v(vq+10,2)}, {v(vq+10,2)} op_sel:[0,0,1] op_sel_hi:[1,0,1]')
    for r in range(0, 16, 2): a(f'v_pk_fma_f32 {v(vX2+r,2)}, {v(vX2+r,2)}, {v(vCB+r,2)}, {v(vSB+r,2)}')
    for r in range(8): a(f'v_cvt_pk_bf16_f32 {v(vAc+r)}, {v(vX2+2*r)}, {v(vX2+2*r+1)}')
    a(f'''buffer_store_dwordx4 {v(vAc,4)}, {v(vL16)}, {SR(sWS)}, {s(t0)} offen
    buffer_store_dwordx4 {v(vAc+4,4)}, {v(vL16)}, {SR(sWS)}, {s(t1)} offen
    s_add_u32 {s(t0)}, {s(sFl)}, {WS_FX}''')
    signal(t0, True)
    V.rel(vBf, 4*NB); V.rel(vAc, 16); V.rel(vGA, 16); V.rel(vSB, 16); V.rel(vCB, 16); V.rel(vX2, 16); V.rel(vXr, 8); V.rel(vOB)
    S.rel(sFr); S.rel(sFr1); S.rel(sCol); S.rel(sOo)
    stamp('h2pub')

    vB = V.alloc(112, 2); NA = 8
    vA = V.alloc(4*NA, 2); vAcc = V.alloc(64, 2); vHp = V.alloc(8, 2); vA1 = V.alloc(3)
    sTp = S.alloc(); sHo = S.alloc()
    a(f'''s_lshl_b32 {s(sTp)}, {s(sG)}, 2
    s_add_u32 {s(sTp)}, {s(sTp)}, {s(sW)}
    s_lshl_b32 {s(t0)}, {s(sTp)}, 6
    s_add_u32 {s(t0)}, {s(t0)}, {WS_FX}
    v_lshlrev_b32 {v(vt2)}, 2, {v(vI)}
    s_mul_i32 {s(t1)}, {s(sTp)}, 28672
    s_add_u32 {s(t1)}, {s(t1)}, {WS_H2}
    s_mul_i32 {s(sHo)}, {s(sTp)}, {112*1024}
    s_mul_i32 {s(t2)}, {s(sM)}, 7168
    s_add_u32 {s(sHo)}, {s(sHo)}, {s(t2)}
    s_add_u32 {s(sHo)}, {s(sHo)}, {WS_HF}
    v_mov_b32 {v(vA1)}, {v(vL16)}
    v_add_u32 {v(vA1+1)}, {2*SLOT}, {v(vL16)}
    v_add_u32 {v(vA1+2)}, {4*SLOT}, {v(vL16)}''')
    poll(lambda: a(f'buffer_load_dword {v(vt1)}, {v(vt2)}, {SR(sWS)}, {s(t0)} offen sc1'),
         lambda: a(f'v_cmp_ne_u32 vcc, {v(vTag)}, {v(vt1)}'))
    acquire()
    stamp('h2rcv')
    for k in range(28):
        if k and k % 4 == 0: a(f's_add_u32 {s(t1)}, {s(t1)}, 4096')
        a(f'buffer_load_dwordx4 {v(vB+4*k,4)}, {v(vL16)}, {SR(sWS)}, {s(t1)} offen offset:{(k%4)*1024} sc1')
    for g in w1dma(4, 4): emit_group(g)
    slot_of = {0: 0, 1: 1, 2: 2, 3: 3, 4: 4, 5: 0, 6: 1}
    seq = [(j, k) for k in range(28) for j in range(3)] + [(j, k) for j in range(3, 7) for k in range(28)]
    def ard(n):
        j, k = seq[n]; sl = slot_of[j]
        a(f'ds_read_b128 {v(vA+4*(n%NA),4)}, {v(vA1 + sl//2)} offset:{(sl%2)*SLOT + k*1024}')
    def epi(j):
        c = vAcc + 16 * (j % 4); h = vHp + 4 * (j & 1)
        r = []
        for q in range(8): r.append(f'v_max_f32 {v(c+q)}, 0, {v(c+q)}')
        for q in range(8): r.append(f'v_mul_f32 {v(c+q)}, {v(c+q)}, {v(c+8+q)}')
        for q in range(4): r.append(f'v_cvt_pk_bf16_f32 {v(h+q)}, {v(c+2*q)}, {v(c+2*q+1)}')
        if j == 4: r.append(f's_add_u32 {s(sHo)}, {s(sHo)}, 4096')
        r.append(f'buffer_store_dwordx4 {v(h,4)}, {v(vL16)}, {SR(sWS)}, {s(sHo)} offen offset:{(j%4)*1024}')
        return r
    fill = {}
    def spread(items, start, per):
        n = start
        while items:
            fill.setdefault(n, []).extend(items[:per]); items = items[per:]; n += 1
        return n
    wdl = []
    for k in range(16, 28):
        for g in wdload(k): wdl.append(g)
    for j, g in enumerate(wdl): fill.setdefault(30 + 2*j, []).extend(g)
    e = spread(epi(0), 84 + 4, 3); e = spread(epi(1), e, 3); e = spread(epi(2), e, 3)
    assert e <= 112
    d56 = w1dma(5, 0) + w1dma(6, 1)
    for j, g in enumerate(d56): fill.setdefault(85 + j, []).extend(g)
    spread(epi(3), 112 + 5, 2); spread(epi(4), 140 + 5, 2); spread(epi(5), 168 + 5, 2)
    PD = NA - 2
    issued = 0
    def limit(n):
        return 140 if n < 140 - PD else 196
    for n in range(196):
        if n == 84:
            a.need('w1_4')
            a('s_barrier')
        if n == 140 - PD:
            a.need('w1_5', 'w1_6')
            a('s_barrier')
        while issued < min(196, n + PD + 1, limit(n)): ard(issued); issued += 1
        j, k = seq[n]; d = v(vAcc + 16 * (j % 4), 16)
        a(f'v_mfma_f32_32x32x16_bf16 {d}, {v(vA+4*(n%NA),4)}, {v(vB+4*k,4)}, {d if k else 0}')
        emit_group(fill.get(n, []))
    for x in epi(6): a(x)
    a(f's_add_u32 {s(t0)}, {s(sFl)}, {WS_FH}')
    signal(t0, True)
    V.rel(vB, 112); V.rel(vA, 4*NA); V.rel(vAcc, 64); V.rel(vHp, 8); V.rel(vA1, 3)
    S.rel(sTp); S.rel(sHo)
    stamp('hpub')
    a(f's_cmp_ge_u32 {s(sM)}, 14\ns_cbranch_scc1 Lfin')

    vAcc = V.alloc(64, 2); NH = 16
    vH = V.alloc(8*NH, 2); vGB = V.alloc(16, 2); vXr = V.alloc(8, 2); vRB = V.alloc(3)
    sH0 = S.alloc(); sH1 = S.alloc(); sTo = S.alloc(); sCol = S.alloc()
    a(f'''s_lshl_b32 {s(sTo)}, {s(sG)}, 1
    s_add_u32 {s(sTo)}, {s(sTo)}, {s(sTH)}
    s_lshl_b32 {s(sTo)}, {s(sTo)}, 1
    s_lshr_b32 {s(t1)}, {s(sW)}, 1
    s_add_u32 {s(sTo)}, {s(sTo)}, {s(t1)}
    s_mul_i32 {s(t2)}, {s(sW)}, 28672
    s_add_u32 {s(t2)}, {s(t2)}, {WS_HF}
    s_mul_i32 {s(sH1)}, {s(sTo)}, {112*1024}
    s_add_u32 {s(sH1)}, {s(sH1)}, {s(t2)}
    s_xor_b32 {s(t1)}, {s(sTo)}, 1
    s_mul_i32 {s(sH0)}, {s(t1)}, {112*1024}
    s_add_u32 {s(sH0)}, {s(sH0)}, {s(t2)}
    s_lshl_b32 {s(sCol)}, {s(sNB)}, 1
    s_and_b32 {s(t1)}, {s(sW)}, 1
    s_add_u32 {s(sCol)}, {s(sCol)}, {s(t1)}
    s_lshl_b32 {s(sCol)}, {s(sCol)}, 5
    s_mul_i32 {s(t1)}, {s(sTo)}, 28672
    s_lshl_b32 {s(t2)}, {s(sCol)}, 6
    s_add_u32 {s(t1)}, {s(t1)}, {s(t2)}
    s_add_u32 {s(t1)}, {s(t1)}, {WS_X2}
    buffer_load_dwordx4 {v(vXr,4)}, {v(vL16)}, {SR(sWS)}, {s(t1)} offen sc1
    buffer_load_dwordx4 {v(vXr+4,4)}, {v(vL16)}, {SR(sWS)}, {s(t1)} offen offset:1024 sc1
    s_lshl_b32 {s(t2)}, {s(sCol)}, 2
    s_add_u32 {s(t2)}, {s(t2)}, {WS_MODG + 4*2240}''')
    poll(lambda: modvec_load(vGB, vHi32, t2), lambda: tagcheck([vGB + 2*j + 1 for j in range(8)], vt0))
    a(f'''s_lshl_b32 {s(t0)}, {s(sG)}, 2
    s_add_u32 {s(t0)}, {s(t0)}, {s(sW)}
    s_lshl_b32 {s(t0)}, {s(t0)}, 6
    s_lshl_b32 {s(t1)}, {s(sTH)}, 3
    s_add_u32 {s(t0)}, {s(t0)}, {s(t1)}
    s_add_u32 {s(t0)}, {s(t0)}, {WS_FH}
    v_and_b32 {v(vt2)}, 3, {v(vLane)}
    v_lshlrev_b32 {v(vt2)}, 4, {v(vt2)}
    v_and_b32 {v(vt1)}, 4, {v(vLane)}
    v_add_u32 {v(vt2)}, {v(vt2)}, {v(vt1)}''')
    for i in range(3):
        a(f'''s_xor_b32 {s(t1)}, {s(sW)}, {i ^ 3}
        s_mul_i32 {s(t1)}, {s(t1)}, 12288
        s_add_u32 {s(t1)}, {s(t1)}, {L_RB + i*4096}
        v_add_u32 {v(vRB+i)}, {s(t1)}, {v(vL16)}''')
    poll(lambda: a(f'buffer_load_dword {v(vt1)}, {v(vt2)}, {SR(sWS)}, {s(t0)} offen sc1'),
         lambda: a(f'v_cmp_ne_u32 vcc, {v(vTag)}, {v(vt1)}'))
    acquire()
    def hload(k):
        if k and k % 4 == 0: a(f's_add_u32 {s(sH0)}, {s(sH0)}, 4096\ns_add_u32 {s(sH1)}, {s(sH1)}, 4096')
        for t_, so in ((0, sH0), (1, sH1)):
            a(f'buffer_load_dwordx4 {v(vH+8*(k%NH)+4*t_,4)}, {v(vL16)}, {SR(sWS)}, {s(so)} offen offset:{(k%4)*1024} sc1')
    for k in range(NH): hload(k)
    for k in range(28):
        for t_ in range(2):
            for b in range(2):
                d = v(vAcc + 16 * (2*t_ + b), 16)
                a(f'v_mfma_f32_32x32x16_bf16 {d}, {ac(wdreg(k,b),4)}, {v(vH+8*(k%NH)+4*t_,4)}, {d if k else 0}')
        if k + NH < 28: hload(k + NH)
    vGf = vH; vXf = vH + 16
    for j in range(8): unpack(vGf + 2*j, vGB + 2*j)
    for i in range(3):
        for q in range(4): a(f'ds_write_b128 {v(vRB+i)}, {v(vAcc+16*i+4*q,4)} offset:{1024*q}')
    for j in range(8): unpack(vXf + 2*j, vXr + j)
    a(f'''s_mul_i32 {s(t0)}, {s(sTo)}, {32*896}
    s_lshl_b32 {s(t1)}, {s(sCol)}, 1
    s_add_u32 {s(t0)}, {s(t0)}, {s(t1)}''')
    a('s_waitcnt lgkmcnt(0)\ns_barrier')
    for i in range(3):
        for q in range(4): a(f'ds_read_b128 {v(vAcc+16*i+4*q,4)}, {v(vRr)} offset:{4096*i + 1024*q}')
    vOo = vAcc + 48
    for i in range(3):
        for r in range(0, 16, 2): a(f'v_pk_add_f32 {v(vOo+r,2)}, {v(vOo+r,2)}, {v(vAcc+16*i+r,2)}')
    for r in range(0, 16, 2): a(f'v_pk_fma_f32 {v(vOo+r,2)}, {v(vOo+r,2)}, {v(vGf+r,2)}, {v(vXf+r,2)}')
    for r in range(8): a(f'v_cvt_pk_bf16_f32 {v(vXr+r)}, {v(vOo+2*r)}, {v(vOo+2*r+1)}')
    a(f'''buffer_store_dwordx4 {v(vXr,4)}, {v(vRow)}, {SR(sOUT)}, {s(t0)} offen
    buffer_store_dwordx4 {v(vXr+4,4)}, {v(vRow)}, {SR(sOUT)}, {s(t0)} offen offset:32''')
    a('Lfin:')
    a(f'''s_cmp_lg_u32 {s(sFl)}, 0
    s_cbranch_scc1 Lnoep
    s_mov_b64 exec, 1
    buffer_store_dword {v(vTag)}, off, {SR(sWS)}, 0
    s_mov_b64 exec, -1
    Lnoep:''')
    if TS:
        a('s_waitcnt vmcnt(0)')
        stamp('end')
        a(f'v_writelane_b32 {v(vTS)}, s100, {nts[0]-1}')
        a(f'v_writelane_b32 {v(vTS)}, {s(sB)}, 31')
        a(f'v_writelane_b32 {v(vTS)}, {s(sLOC)}, 30')
        a(f's_lshl_b32 {s(t0)}, {s(sFl)}, 5\ns_add_u32 {s(t0)}, {s(t0)}, {WS_TS}\nv_lshlrev_b32 {v(vt0)}, 2, {v(vLane)}\ns_mov_b32 exec_hi, 0')
        a(f'buffer_store_dword {v(vTS)}, {v(vt0)}, {SR(sWS)}, {s(t0)} offen')
    a('Lend:\ns_endpgm')
    slowpath()
    for ln, le, code in cold:
        a(f'{ln}:'); a(code); a(f's_branch {le}')
    body = a.finalize(verbose=opt.get('verbose', False))
    hdr = open('adaLN_cond__grouped_kv_mqa__glu_gated_reglu__prompt.s.ref').read().split('; Override launch')[0]
    text = hdr + f'''; Generated by the author's own generator script (persistent single launch, 256 workgroups, one per CU).
; @launch grid=(256,1,1) block=(256,1,1) lds={LDS_BYTES}
.amdgcn_target "amdgcn-amd-amdhsa--gfx950"
.text
.globl {KNAME}
.p2align 8
.type {KNAME},@function
{KNAME}:
{body}.section .rodata,"a"
.p2align 6
.amdhsa_kernel {KNAME}
  .amdhsa_next_free_vgpr 512
  .amdhsa_next_free_sgpr 102
  .amdhsa_accum_offset 256
  .amdhsa_group_segment_fixed_size 0
  .amdhsa_kernarg_size 112
  .amdhsa_user_sgpr_count 2
  .amdhsa_user_sgpr_kernarg_segment_ptr 1
  .amdhsa_system_sgpr_workgroup_id_x 1
.end_amdhsa_kernel
'''
    if opt.get('verbose'): print('vgpr hi', V.hi, 'sgpr hi', S.hi, 'text bytes', len(text))
    return text, tsnames

if __name__ == '__main__':
    out = sys.argv[1] if len(sys.argv) > 1 else 'adaLN_cond__grouped_kv_mqa__glu_gated_reglu__prompt.s'
    opt = {'verbose': True}
    for x in sys.argv[2:]:
        k, _, val = x.partition('=')
        opt[k] = int(val) if val else True
    t, _ = generate(opt)
    open(out, 'w').write(t)
```

```python
import sys, struct
sys.path.insert(0, 'work')
from asmlib import Asm

KNAME = 'adaLN_cond__grouped_kv_mqa__glu_gated_reglu__prompt_kernel'

WS_EPOCH = 0
WS_MODG = 0x1000
WS_FKV = 0x4000
WS_FO = 0x6000
WS_FX = 0x7000
WS_FH = 0x8000
WS_ST = 0x10000
WS_KV = 0x40000
WS_WO = 0x80000
WS_W1 = 0x100000
WS_WD = 0x410000
WS_O = 0x600000
WS_H2 = 0x800000
WS_X2 = 0xA00000
WS_HF = 0xC00000
WS_TS = 0x1400000
WS_DBG = 0x1500000
WS_SIZE = 0x2000000
OOB = 0x7ff00000

L_WQ = 0
L_SHUF = 0
L_WM = 32768
L_SILU = 49152
L_KVW = 100352
L_H1 = 100352
L_QX = 153600
L_KOWN = 161792
L_LOC = 162816
SLOT = 28672
L_RB = 114688
LDS_BYTES = 163840

def f32(x): return '0x%08x' % struct.unpack('<I', struct.pack('<f', x))[0]

class Regs:
    def __init__(self, kind, n, start=0):
        self.kind = kind; self.free = [i >= start for i in range(n)]; self.hi = 0
    def alloc(self, n=1, align=None):
        if align is None: align = 1 if n == 1 else 2
        i = 0
        while i + n <= len(self.free):
            if i % align == 0 and all(self.free[i:i + n]):
                for j in range(i, i + n): self.free[j] = False
                self.hi = max(self.hi, i + n)
                return i
            i += 1
        raise RuntimeError(f'out of {self.kind} registers ({n})')
    def rel(self, i, n=1):
        for j in range(i, i + n):
            assert not self.free[j], (self.kind, j)
            self.free[j] = True

def rr(k, i, n=1): return f'{k}{i}' if n == 1 else f'{k}[{i}:{i+n-1}]'
def v(i, n=1): return rr('v', i, n)
def ac(i, n=1): return rr('a', i, n)
def s(i, n=1): return rr('s', i, n)

def generate(opt=None):
    opt = dict(opt or {})
    TS = opt.get('ts', False)
    STOP = opt.get('stop', None)
    FORCE_NONLOCAL = opt.get('nonlocal', False)
    FORCE_SLOW = opt.get('slow', False)
    a = Asm()
    V = Regs('v', 256, 1); S = Regs('s', 100, 3)
    sX = S.alloc(4, 4); sWQ = S.alloc(4, 4); sKV = S.alloc(4, 4); sSH = S.alloc(4, 4); sWM = S.alloc(4, 4)
    sWS = S.alloc(4, 4); sOUT = S.alloc(4, 4); sCC = S.alloc(4, 4)
    pWK = S.alloc(4, 4)
    pWO = S.alloc(2, 2); pWG = S.alloc(4, 4); pWD = S.alloc(2, 2)
    sW = S.alloc(); sL = S.alloc(); sT = S.alloc(); sHQ = S.alloc(); sG = S.alloc(); sM = S.alloc()
    sTAG = S.alloc(); sB = S.alloc(); sXCC = S.alloc(); sLOC = S.alloc()
    t0 = S.alloc(); t1 = S.alloc(); t2 = S.alloc(); t3 = S.alloc(); t4 = S.alloc(); t5 = S.alloc()
    sM56 = S.alloc(2, 2)
    nts = [0]
    tsnames = []
    vTS = V.alloc() if TS else None
    def stamp(name):
        if TS:
            assert nts[0] < 30
            if nts[0]: a(f'v_writelane_b32 {v(vTS)}, s100, {nts[0]-1}')
            a(f'{"s_memtime" if opt.get("cyc") else "s_memrealtime"} s[100:101]'); nts[0] += 1; tsnames.append(name)
    def SR(x): return s(x, 4)
    vLane = V.alloc(); vL16 = V.alloc(); vTag = V.alloc(); vI = V.alloc(); vGp = V.alloc()
    vt0 = V.alloc(); vt1 = V.alloc(); vt2 = V.alloc(); vt3 = V.alloc()
    vWDa = V.alloc(2); vRr = V.alloc(); vHi32 = V.alloc(); vRow = V.alloc()

    def poll(load_fn, check_fn):
        lp = a.lab('Lpoll'); ld = a.lab('Lpdone')
        a(f'{lp}:')
        load_fn()
        a(f's_sub_u32 {s(sB)}, {s(sB)}, 1\ns_cmp_lt_i32 {s(sB)}, 0\ns_cbranch_scc1 {ld}')
        check_fn()
        a(f's_cbranch_vccnz {lp}\n{ld}:')
    def tagcheck(regs, tmp, mask=False):
        a(f'v_xor_b32 {v(tmp)}, {v(vTag)}, {v(regs[0])}')
        for r in regs[1:]:
            a(f'v_bitop3_b32 {v(tmp)}, {v(tmp)}, {v(r)}, {v(vTag)} bitop3:0xf6')
        if mask: a(f'v_cmp_lt_u32 vcc, 15, {v(tmp)}')
        else: a(f'v_cmp_ne_u32 vcc, 0, {v(tmp)}')
    def unpack(dst, src):
        a(f'v_lshlrev_b32 {v(dst)}, 16, {v(src)}')
        a(f'v_and_b32 {v(dst + 1)}, 0xffff0000, {v(src)}')
    def signal(vaddr_sgpr_off, local):
        a('s_waitcnt vmcnt(0)')
        if local:
            ln = a.lab('Lsig_nl'); le = a.lab('Lsig_e')
            a(f's_cmp_eq_u32 {s(sLOC)}, 0\ns_mov_b64 exec, 1\ns_cbranch_scc1 {ln}')
            a(f'buffer_store_dword {v(vTag)}, off, {SR(sWS)}, {s(vaddr_sgpr_off)}')
            a(f'{le}:\ns_mov_b64 exec, -1')
            cold.append((ln, le, f'buffer_wbl2 sc1\ns_waitcnt vmcnt(0)\nbuffer_store_dword {v(vTag)}, off, {SR(sWS)}, {s(vaddr_sgpr_off)} sc1'))
    def acquire():
        ln = a.lab('Lacq_nl'); le = a.lab('Lacq_e')
        a(f's_cmp_eq_u32 {s(sLOC)}, 0\ns_cbranch_scc1 {ln}\n{le}:')
        cold.append((ln, le, 'buffer_inv sc1\ns_waitcnt vmcnt(0)'))
    cold = []

    a(f's_cmp_ge_u32 s2, 256\ns_cbranch_scc1 Lend')
    stamp('start')
    a(f'''s_load_dwordx2 {s(sWS,2)}, s[0:1], 104
    s_load_dwordx2 {s(sCC,2)}, s[0:1], 72
    s_load_dwordx2 {s(sWM,2)}, s[0:1], 80
    s_load_dwordx2 {s(sX,2)}, s[0:1], 0
    s_load_dwordx4 {s(pWK,4)}, s[0:1], 16
    s_load_dwordx2 {s(sWQ,2)}, s[0:1], 8
    s_load_dwordx2 {s(pWO,2)}, s[0:1], 32
    s_load_dwordx4 {s(pWG,4)}, s[0:1], 48
    s_load_dwordx2 {s(pWD,2)}, s[0:1], 64
    s_load_dwordx2 {s(sOUT,2)}, s[0:1], 88''')
    a(f'v_lshrrev_b32 {v(vt0)}, 6, v0')
    a(f'v_and_b32 {v(vLane)}, 63, v0')
    a(f'v_readfirstlane_b32 {s(sW)}, {v(vt0)}')
    for srd, n in ((sX, 1835008), (sWQ, 401408), (sKV, 25088), (sWM, 448 * 5376), (sWS, WS_SIZE), (sOUT, 1835008), (sCC, 896)):
        a(f's_mov_b32 {s(srd+2)}, {n}\ns_mov_b32 {s(srd+3)}, 0x20000')
    a(f's_mov_b32 {s(sSH+3)}, 0x20000')
    a(f'''s_getreg_b32 {s(sXCC)}, hwreg(HW_REG_XCC_ID, 0, 4)
    s_and_b32 {s(t0)}, s2, 7
    s_lshr_b32 {s(t1)}, s2, 3
    s_lshl_b32 {s(sL)}, {s(t0)}, 5
    s_add_u32 {s(sL)}, {s(sL)}, {s(t1)}
    s_lshr_b32 {s(sT)}, {s(sL)}, 2
    s_and_b32 {s(sHQ)}, {s(sL)}, 3
    s_lshr_b32 {s(sG)}, {s(sL)}, 4
    s_and_b32 {s(sM)}, {s(sL)}, 15
    s_mov_b32 {s(sB)}, 0x20000
    s_mov_b32 {s(sM56)}, -1
    s_mov_b32 {s(sM56+1)}, 0x00ffffff''')
    sU = S.alloc(); sUok = S.alloc()
    a(f'''s_lshr_b32 {s(t2)}, {s(t1)}, 2
    s_lshl_b32 {s(t2)}, {s(t2)}, 3
    s_add_u32 {s(t2)}, {s(t2)}, {s(t0)}
    s_and_b32 {s(t3)}, {s(t1)}, 3
    s_lshl_b32 {s(sU)}, {s(t2)}, 2
    s_add_u32 {s(sU)}, {s(sU)}, {s(t3)}
    s_cmp_lt_u32 {s(t2)}, 42
    s_cselect_b32 {s(sUok)}, 1, 0
    s_cmp_eq_u32 {s(sW)}, 3
    s_cselect_b32 {s(sUok)}, {s(sUok)}, 0''')
    a(f'''v_lshlrev_b32 {v(vL16)}, 4, {v(vLane)}
    v_and_b32 {v(vI)}, 15, {v(vLane)}
    v_lshrrev_b32 {v(vGp)}, 4, {v(vLane)}''')
    vX56 = V.alloc()
    a(f'''v_mov_b32 {v(vt0)}, {OOB}
    v_cmp_gt_u32 vcc, 56, {v(vLane)}
    v_cndmask_b32 {v(vX56)}, {v(vt0)}, {v(vL16)}, vcc''')
    vWM = V.alloc()
    a(f'''v_lshrrev_b32 {v(vt0)}, 1, {v(vLane)}
    v_mul_u32_u24 {v(vt0)}, 5376, {v(vt0)}
    v_and_b32 {v(vt1)}, 1, {v(vLane)}
    v_lshl_add_u32 {v(vWM)}, {v(vt1)}, 4, {v(vt0)}''')
    sSrc = S.alloc(); sStr8 = S.alloc(); sDst = S.alloc(); sDP = S.alloc(); sDK = S.alloc(); sSHn = S.alloc()
    vSHs = V.alloc(); vSHs3 = V.alloc(); vSHd = V.alloc(); vSHr = V.alloc()
    a(f'''s_mul_i32 {s(t0)}, {s(sL)}, 2341
    s_lshr_b32 {s(t0)}, {s(t0)}, 16
    s_mul_i32 {s(t1)}, {s(t0)}, 28
    s_sub_u32 {s(t1)}, {s(sL)}, {s(t1)}
    s_mul_i32 {s(t2)}, {s(sL)}, 9363
    s_lshr_b32 {s(t2)}, {s(t2)}, 16
    s_mul_i32 {s(t3)}, {s(t2)}, 7
    s_sub_u32 {s(t3)}, {s(sL)}, {s(t3)}
    s_cmp_lt_u32 {s(sW)}, 2
    s_cselect_b32 {s(t0)}, {s(t0)}, {s(t2)}
    s_cselect_b32 {s(t1)}, {s(t1)}, {s(t3)}''')
    a(f'''s_mov_b32 {s(t2)}, 896
    s_mov_b32 {s(t3)}, {64*896}
    s_mov_b32 {s(sDP)}, 1024
    s_mov_b32 {s(sDK)}, 2048
    s_mov_b32 {s(t4)}, 256
    s_mov_b32 {s(sDst)}, {112*2048}
    s_cmov_b32 {s(t2)}, 3584
    s_cmov_b32 {s(t3)}, {64*3584}
    s_cmov_b32 {s(sDP)}, {2*28672}
    s_cmov_b32 {s(sDK)}, 1024
    s_cmov_b32 {s(t4)}, 28672
    s_cmov_b32 {s(sDst)}, {4*28672}
    s_mov_b32 {s(t5)}, 512
    s_mov_b32 {s(sSH+2)}, {448*3584}
    s_mov_b32 {s(sSHn)}, 196
    s_cmp_eq_u32 {s(sW)}, 3
    s_cselect_b32 {s(t3)}, {28*896}, {s(t3)}
    s_cselect_b32 {s(sDP)}, 32768, {s(sDP)}
    s_cselect_b32 {s(sDK)}, 512, {s(sDK)}
    s_cselect_b32 {s(t4)}, 16384, {s(t4)}
    s_cselect_b32 {s(sDst)}, 65536, {s(sDst)}
    s_cselect_b32 {s(t5)}, 256, {s(t5)}
    s_cselect_b32 {s(sSH+2)}, 401408, {s(sSH+2)}
    s_cselect_b32 {s(sSHn)}, 112, {s(sSHn)}''')
    a(f'''v_lshrrev_b32 {v(vt0)}, 3, {v(vLane)}
    v_mul_lo_u32 {v(vt1)}, {v(vt0)}, {s(t2)}
    v_and_b32 {v(vt2)}, 7, {v(vLane)}
    v_lshl_add_u32 {v(vSHs)}, {v(vt2)}, 4, {v(vt1)}
    v_mov_b32 {v(vSHs3)}, {v(vSHs)}
    v_and_b32 {v(vt0)}, 1, {v(vGp)}
    v_mul_lo_u32 {v(vt1)}, {v(vt0)}, {s(t4)}
    v_lshrrev_b32 {v(vt2)}, 1, {v(vGp)}
    v_mul_lo_u32 {v(vt3)}, {v(vt2)}, {s(t5)}
    v_add_u32 {v(vt1)}, {v(vt1)}, {v(vt3)}
    v_lshl_add_u32 {v(vSHd)}, {v(vI)}, 4, {v(vt1)}''')
    lw = a.lab('Lw3')
    a(f'''s_cbranch_scc0 {lw}
    s_mov_b32 exec_lo, 0
    v_mov_b32 {v(vSHs3)}, {OOB}
    s_mov_b64 exec, -1
    {lw}:''')
    vSwp8 = V.alloc()
    a(f'''v_and_b32 {v(vt1)}, 1, {v(vI)}
    v_lshlrev_b32 {v(vt1)}, 4, {v(vt1)}
    v_and_b32 {v(vt3)}, 2, {v(vI)}
    v_lshl_add_u32 {v(vSwp8)}, {v(vt3)}, 2, {v(vt1)}''')
    a(f'''v_lshrrev_b32 {v(vt1)}, 2, {v(vI)}
    v_lshl_add_u32 {v(vt1)}, {v(vt2)}, 3, {v(vt1)}
    v_lshlrev_b32 {v(vt1)}, 7, {v(vt1)}
    v_lshl_add_u32 {v(vt1)}, {v(vt0)}, 5, {v(vt1)}
    v_add_u32 {v(vt1)}, {v(vt1)}, {v(vSwp8)}
    s_lshl_b32 {s(t4)}, {s(sW)}, 13
    v_add_u32 {v(vSHr)}, {s(t4)}, {v(vt1)}''')
    a(f'''s_mul_i32 {s(sSrc)}, {s(t0)}, {s(t3)}
    s_lshl_b32 {s(t4)}, {s(t1)}, 7
    s_add_u32 {s(sSrc)}, {s(sSrc)}, {s(t4)}
    s_lshl_b32 {s(sStr8)}, {s(t2)}, 3
    s_mul_i32 {s(sDst)}, {s(sDst)}, {s(t1)}
    s_mul_i32 {s(t4)}, {s(t0)}, {s(sDK)}
    s_cmp_eq_u32 {s(sW)}, 3
    s_cselect_b32 {s(t5)}, 1, 2
    s_lshl_b32 {s(t4)}, {s(t4)}, {s(t5)}
    s_add_u32 {s(sDst)}, {s(sDst)}, {s(t4)}
    s_mov_b32 {s(t4)}, {WS_W1}
    s_cmp_eq_u32 {s(sW)}, 1
    s_cselect_b32 {s(t4)}, {WS_W1 + 256}, {s(t4)}
    s_cmp_eq_u32 {s(sW)}, 2
    s_cselect_b32 {s(t4)}, {WS_WD}, {s(t4)}
    s_cmp_eq_u32 {s(sW)}, 3
    s_cselect_b32 {s(t4)}, {WS_WO}, {s(t4)}
    s_add_u32 {s(sDst)}, {s(sDst)}, {s(t4)}''')
    sXR = S.alloc(8)
    for i in range(8):
        a(f'''s_lshl_b32 {s(t0)}, {s(sHQ)}, 3
        s_lshl_b32 {s(t1)}, {s(sW)}, 1
        s_add_u32 {s(t0)}, {s(t0)}, {s(t1)}
        s_add_u32 {s(t0)}, {s(t0)}, {8*(i>>1) + (i&1)}
        s_and_b32 {s(sXR+i)}, {s(t0)}, 31''') if i == 0 else a(f'''s_add_u32 {s(t1)}, {s(t0)}, {8*(i>>1) + (i&1)}
        s_and_b32 {s(sXR+i)}, {s(t1)}, 31''')
    a(f's_lshl_b32 {s(t5)}, {s(sT)}, 5')
    a('s_waitcnt lgkmcnt(0)')
    a(f's_load_dword {s(sTAG)}, {s(sWS,2)}, {WS_EPOCH}')
    stamp('karg')
    vC = V.alloc(4, 2)
    l1 = a.lab('Lnomod')
    a(f's_cmp_eq_u32 {s(sUok)}, 0\ns_cbranch_scc1 {l1}')
    a(f'buffer_load_dwordx4 {v(vC,4)}, {v(vL16)}, {SR(sCC)}, 0 offen')
    a(f's_lshl_b32 {s(t0)}, {s(sU)}, 5')
    for j in range(14):
        a(f's_mov_b32 m0, {L_WM + j*1024}')
        if j: a(f's_add_u32 {s(t0)}, {s(t0)}, {32*5376}')
        a(f'buffer_load_dwordx4 {v(vWM)}, {SR(sWM)}, {s(t0)} offen lds', w=[f'wm{j}'])
    a(f'{l1}:')
    vXR = V.alloc(32, 2)
    for i in range(8):
        a(f's_add_u32 {s(t0)}, {s(t5)}, {s(sXR+i)}\ns_mul_i32 {s(t0)}, {s(t0)}, 896')
        a(f'buffer_load_dwordx4 {v(vXR+4*i,4)}, {v(vX56)}, {SR(sX)}, {s(t0)} offen')
    a(f'''s_cmp_lt_u32 {s(sW)}, 2
    s_cselect_b32 {s(sKV)}, {s(pWK)}, {s(pWK+2)}
    s_cselect_b32 {s(sKV+1)}, {s(pWK+1)}, {s(pWK+3)}
    s_and_b32 {s(t0)}, {s(sW)}, 1
    s_mul_i32 {s(t0)}, {s(t0)}, {13*1024}
    s_mul_i32 {s(t1)}, {s(sW)}, {13*1024}
    s_add_u32 {s(t1)}, {s(t1)}, {L_KVW}''')
    for j in range(13):
        if j % 4 == 0:
            if j: a(f's_add_u32 {s(t0)}, {s(t0)}, 4096\ns_add_u32 {s(t1)}, {s(t1)}, 4096')
            a(f's_mov_b32 m0, {s(t1)}')
        a(f'buffer_load_dwordx4 {v(vL16)}, {SR(sKV)}, {s(t0)} offen offset:{(j%4)*1024} lds', w=['kvw'])
    a(f'''s_cmp_eq_u32 {s(sW)}, 0
    s_cselect_b32 {s(sSH)}, {s(pWG)}, {s(pWG+2)}
    s_cselect_b32 {s(sSH+1)}, {s(pWG+1)}, {s(pWG+3)}
    s_cmp_eq_u32 {s(sW)}, 2
    s_cselect_b32 {s(sSH)}, {s(pWD)}, {s(sSH)}
    s_cselect_b32 {s(sSH+1)}, {s(pWD+1)}, {s(sSH+1)}
    s_cmp_eq_u32 {s(sW)}, 3
    s_cselect_b32 {s(sSH)}, {s(pWO)}, {s(sSH)}
    s_cselect_b32 {s(sSH+1)}, {s(pWO+1)}, {s(sSH+1)}''')
    l2 = a.lab('Lnosh')
    a(f's_cmp_ge_u32 {s(sL)}, {s(sSHn)}\ns_cbranch_scc1 {l2}')
    a(f's_lshl_b32 {s(t1)}, {s(sW)}, 13')
    for j in range(8):
        if j == 4: a(f's_cmp_eq_u32 {s(sW)}, 3\ns_cbranch_scc1 {l2}')
        a(f's_add_u32 m0, {s(t1)}, {L_SHUF + j*1024}')
        if j: a(f's_add_u32 {s(sSrc)}, {s(sSrc)}, {s(sStr8)}')
        a(f'buffer_load_dwordx4 {v(vSHs3 if j == 3 else vSHs)}, {SR(sSH)}, {s(sSrc)} offen lds', w=['shuf'])
    a(f'{l2}:')
    a(f's_and_b32 {s(sTAG)}, {s(sTAG)}, 0xfffffff0\ns_add_u32 {s(sTAG)}, {s(sTAG)}, 0x9e3779b0\nv_mov_b32 {v(vTag)}, {s(sTAG)}')

    l3 = a.lab('Lnomod2')
    a(f's_cmp_eq_u32 {s(sUok)}, 0\ns_cbranch_scc1 {l3}')
    vCf = V.alloc(8, 2); vCe = V.alloc(8, 2)
    for j in range(4): unpack(vCf + 2*j, vC + j)
    for j in range(8): a(f'v_mul_f32 {v(vCe+j)}, {f32(-1.4426950408889634)}, {v(vCf+j)}')
    for j in range(8): a(f'v_exp_f32 {v(vCe+j)}, {v(vCe+j)}')
    for j in range(8): a(f'v_add_f32 {v(vCe+j)}, 1.0, {v(vCe+j)}')
    for j in range(8): a(f'v_rcp_f32 {v(vCe+j)}, {v(vCe+j)}')
    for j in range(8): a(f'v_mul_f32 {v(vCf+j)}, {v(vCf+j)}, {v(vCe+j)}')
    for j in range(4): a(f'v_cvt_pk_bf16_f32 {v(vC+j)}, {v(vCf+2*j)}, {v(vCf+2*j+1)}')
    a(f'ds_write_b128 {v(vL16)}, {v(vC,4)} offset:{L_SILU}')
    vMB = V.alloc(56, 2); vMA = V.alloc(16, 2); vMD = V.alloc(4, 2)
    a(f'''v_lshlrev_b32 {v(vt0)}, 4, {v(vGp)}
    v_lshlrev_b32 {v(vt1)}, 3, {v(vI)}
    v_lshl_add_u32 {v(vt1)}, {v(vGp)}, 8, {v(vt1)}''')
    for j in range(14): a(f'ds_read_b128 {v(vMB+4*j,4)}, {v(vt0)} offset:{L_SILU + 64*j}')
    def modrd(j):
        a(f'ds_read_b64_tr_b16 {v(vMA+4*(j%4),2)}, {v(vt1)} offset:{L_WM + 1024*j}', r=[f'wm{j}'])
        a(f'ds_read_b64_tr_b16 {v(vMA+4*(j%4)+2,2)}, {v(vt1)} offset:{L_WM + 1024*j + 128}')
    for j in range(3): modrd(j)
    for j in range(14):
        if j + 3 < 14: modrd(j + 3)
        a(f'v_mfma_f32_16x16x32_bf16 {v(vMD,4)}, {v(vMA+4*(j%4),4)}, {v(vMB+4*j,4)}, {v(vMD,4) if j else 0}')
    a(f'''s_lshl_b32 {s(t0)}, {s(sU)}, 6
    s_add_u32 {s(t0)}, {s(t0)}, {WS_MODG}
    v_mov_b32 {v(vC+1)}, {v(vTag)}
    v_mov_b32 {v(vC+3)}, {v(vTag)}
    v_cvt_pk_bf16_f32 {v(vC)}, {v(vMD)}, {v(vMD+1)}
    v_cvt_pk_bf16_f32 {v(vC+2)}, {v(vMD+2)}, {v(vMD+3)}
    s_mov_b32 exec_lo, 0x00010001
    s_mov_b32 exec_hi, 0x00010001
    buffer_store_dwordx4 {v(vC,4)}, {v(vLane)}, {SR(sWS)}, {s(t0)} offen sc1
    s_mov_b64 exec, -1''')
    a(f'{l3}:')
    V.rel(vCf, 8); V.rel(vCe, 8); V.rel(vMB, 56); V.rel(vMA, 16); V.rel(vMD, 4); V.rel(vWM)
    stamp('modpub')

    vS1 = V.alloc(8); vS2 = V.alloc(8); vXH = V.alloc(64, 2); vOne = V.alloc()
    a(f'v_mov_b32 {v(vOne)}, 0x3f803f80')
    for q in range(4):
        for i in range(8):
            a(f'v_dot2_f32_bf16 {v(vS1+i)}, {v(vXR+4*i+q)}, {v(vOne)}, {v(vS1+i) if q else 0}')
            a(f'v_dot2_f32_bf16 {v(vS2+i)}, {v(vXR+4*i+q)}, {v(vXR+4*i+q)}, {v(vS2+i) if q else 0}')
    for b in (vS1, vS2):
        for i in range(0, 8, 2): a(f'v_permlane32_swap_b32 {v(b+i)}, {v(b+i+1)}')
    for b in (vS1, vS2):
        for i in range(0, 8, 2): a(f'v_add_f32 {v(b+i)}, {v(b+i)}, {v(b+i+1)}')
    for b in (vS1, vS2):
        for i in (0, 4): a(f'v_permlane16_swap_b32 {v(b+i)}, {v(b+i+2)}')
    for b in (vS1, vS2):
        for i in (0, 4): a(f'v_add_f32 {v(b+i)}, {v(b+i)}, {v(b+i+2)}')
    for b in (vS1, vS2):
        a(f'v_add_f32_dpp {v(b+1)}, {v(b)}, {v(b)} row_ror:8 row_mask:0xf bank_mask:0x3')
    for b in (vS1, vS2):
        a(f'v_add_f32_dpp {v(b+1)}, {v(b+4)}, {v(b+4)} row_ror:8 row_mask:0xf bank_mask:0xc')
    for m_ in ('row_half_mirror', 'quad_perm:[1,0,3,2]', 'quad_perm:[2,3,0,1]'):
        for b in (vS1, vS2):
            a(f'v_add_f32_dpp {v(b+1)}, {v(b+1)}, {v(b+1)} {m_} row_mask:0xf bank_mask:0xf')
    a(f'''v_mul_f32 {v(vS1)}, {f32(1/448)}, {v(vS1+1)}
    v_mul_f32 {v(vS2)}, {f32(1/448)}, {v(vS2+1)}
    v_fma_f32 {v(vS2)}, -{v(vS1)}, {v(vS1)}, {v(vS2)}
    v_max_f32 {v(vS2)}, 0, {v(vS2)}
    v_add_f32 {v(vS2)}, {f32(1e-5)}, {v(vS2)}
    v_rsq_f32 {v(vS2)}, {v(vS2)}
    v_mul_f32 {v(vS1)}, -1.0, {v(vS1)}
    v_mul_f32 {v(vS1)}, {v(vS1)}, {v(vS2)}''')
    sST = S.alloc(16, 2)
    for i in range(8):
        ln = (i & 1) * 32 + ((i >> 1) & 1) * 16 + (i >> 2) * 8
        a(f'v_readlane_b32 {s(sST+2*i)}, {v(vS2)}, {ln}\nv_readlane_b32 {s(sST+2*i+1)}, {v(vS1)}, {ln}')
    for i in range(8):
        for q in range(4): unpack(vXH + 8*i + 2*q, vXR + 4*i + q)
        for q in range(4):
            r = v(vXH + 8*i + 2*q, 2)
            a(f'v_pk_fma_f32 {r}, {r}, {s(sST+2*i,2)}, {s(sST+2*i,2)} op_sel:[0,0,1] op_sel_hi:[1,0,1]')
    S.rel(sST, 16); V.rel(vS1, 8); V.rel(vS2, 8); V.rel(vOne); V.rel(vX56)
    stamp('ln1')

    l4 = a.lab('Lnosh2')
    a(f's_cmp_ge_u32 {s(sL)}, {s(sSHn)}\ns_cbranch_scc1 {l4}')
    a.need('shuf')
    for half in range(2):
        if half: a(f's_cmp_eq_u32 {s(sW)}, 3\ns_cbranch_scc1 {l4}')
        for ks in (2*half, 2*half + 1):
            for p in range(2):
                d = vXR + 4 * (2*ks + p)
                a(f'ds_read_b64_tr_b16 {v(d,2)}, {v(vSHr)} offset:{L_SHUF + ks*2048 + p*64}')
                a(f'ds_read_b64_tr_b16 {v(d+2,2)}, {v(vSHr)} offset:{L_SHUF + ks*2048 + p*64 + 512}')
        for ks in (2*half, 2*half + 1):
            a(f's_add_u32 {s(t0)}, {s(sDst)}, {s(sDP)}')
            a(f'buffer_store_dwordx4 {v(vXR+8*ks,4)}, {v(vSHd)}, {SR(sWS)}, {s(sDst)} offen sc1')
            a(f'buffer_store_dwordx4 {v(vXR+8*ks+4,4)}, {v(vSHd)}, {SR(sWS)}, {s(t0)} offen sc1')
            a(f's_add_u32 {s(sDst)}, {s(sDst)}, {s(sDK)}')
    a(f'{l4}:')
    for x in (vSHs, vSHs3, vSHd, vSHr): V.rel(x)
    for x in (sSrc, sStr8, sDst, sDP, sDK, sSHn, sU, sUok): S.rel(x)
    stamp('shufst')
    a.need('kvw')
    a('s_waitcnt lgkmcnt(0)\ns_barrier')

    stamp('bar1')
    vWQ = V.alloc()
    a(f'''v_mul_u32_u24 {v(vt0)}, 4682, {v(vLane)}
    v_lshrrev_b32 {v(vt0)}, 16, {v(vt0)}
    v_mul_u32_u24 {v(vt1)}, 14, {v(vt0)}
    v_sub_u32 {v(vt1)}, {v(vLane)}, {v(vt1)}
    v_and_b32 {v(vt2)}, 1, {v(vt0)}
    v_lshrrev_b32 {v(vt0)}, 1, {v(vt0)}
    v_lshl_add_u32 {v(vt0)}, {v(vt2)}, 2, {v(vt0)}
    v_mul_u32_u24 {v(vt0)}, 896, {v(vt0)}
    v_lshl_add_u32 {v(vWQ)}, {v(vt1)}, 4, {v(vt0)}
    s_mul_i32 {s(t0)}, {s(sW)}, {112*896}
    s_mul_i32 {s(t1)}, {s(sHQ)}, 224
    s_add_u32 {s(t0)}, {s(t0)}, {s(t1)}
    s_mul_i32 {s(t1)}, {s(sW)}, {28*896}
    s_mov_b64 exec, {s(sM56,2)}''')
    for j in range(28):
        a(f's_add_u32 m0, {s(t1)}, {L_WQ + j*896}')
        if j: a(f's_add_u32 {s(t0)}, {s(t0)}, {(2 if j & 1 else 6)*896}')
        a(f'buffer_load_dwordx4 {v(vWQ)}, {SR(sWQ)}, {s(t0)} offen lds', w=['wq'])
    a('s_mov_b64 exec, -1')
    V.rel(vWQ)
    stamp('wqiss')
    a(f'''v_and_b32 {v(vt0)}, 3, {v(vI)}
    v_lshlrev_b32 {v(vt0)}, 3, {v(vt0)}
    s_cmp_lt_u32 {s(sW)}, 2
    s_cselect_b64 vcc, -1, 0
    v_cndmask_b32 {v(vt0)}, {v(vSwp8)}, {v(vt0)}, vcc
    v_lshrrev_b32 {v(vt1)}, 2, {v(vI)}
    v_lshl_add_u32 {v(vt1)}, {v(vGp)}, 3, {v(vt1)}
    v_mul_u32_u24 {v(vt1)}, 56, {v(vt1)}
    s_lshr_b32 {s(t0)}, {s(sW)}, 1
    s_mul_i32 {s(t0)}, {s(t0)}, {26*1024}
    s_and_b32 {s(t1)}, {s(sW)}, 1
    s_lshl_b32 {s(t1)}, {s(t1)}, 5
    s_add_u32 {s(t0)}, {s(t0)}, {s(t1)}
    s_add_u32 {s(t0)}, {s(t0)}, {L_KVW}
    v_add3_u32 {v(vt0)}, {v(vt0)}, {v(vt1)}, {s(t0)}''')
    for j in range(14):
        a(f'ds_read_b64_tr_b16 {ac(4*j,2)}, {v(vt0)} offset:{1792*j}')
        a(f'ds_read_b64_tr_b16 {ac(4*j+2,2)}, {v(vt0)} offset:{1792*j + 224}')
    vHB = V.alloc(); vKVst = V.alloc(); vKown = V.alloc(); vPad = V.alloc(2, 2); vMod = V.alloc()
    sPadM = S.alloc(2, 2)
    a(f'''v_and_b32 {v(vt0)}, 7, {v(vI)}
    s_lshl_b32 {s(t0)}, {s(sHQ)}, 3
    v_add_u32 {v(vt1)}, {s(t0)}, {v(vt0)}
    v_mul_u32_u24 {v(vt1)}, 912, {v(vt1)}
    v_lshl_add_u32 {v(vt1)}, {v(vGp)}, 4, {v(vt1)}
    v_add_u32 {v(vHB)}, {L_H1}, {v(vt1)}
    v_lshlrev_b32 {v(vMod)}, 5, {v(vLane)}
    s_and_b32 {s(t2)}, {s(sW)}, 1
    s_lshr_b32 {s(t3)}, {s(sHQ)}, 1
    s_and_b32 {s(t4)}, {s(sHQ)}, 1''')
    lv = a.lab('Lvaddr'); le = a.lab('Laddr_e')
    a(f'''s_cmp_ge_u32 {s(sW)}, 2
    s_cbranch_scc1 {lv}''')
    a(f'''v_lshrrev_b32 {v(vt1)}, 1, {v(vGp)}
    v_and_b32 {v(vt2)}, 1, {v(vGp)}
    v_lshlrev_b32 {v(vt2)}, 3, {v(vt2)}
    v_lshl_add_u32 {v(vKown)}, {v(vt1)}, 7, {v(vt2)}
    v_lshl_add_u32 {v(vKown)}, {v(vt0)}, 4, {v(vKown)}
    s_lshl_b32 {s(t0)}, {s(t2)}, 8
    s_add_u32 {s(t0)}, {s(t0)}, {L_KOWN}
    v_add_u32 {v(vKown)}, {s(t0)}, {v(vKown)}
    v_lshl_add_u32 {v(vKVst)}, {v(vt1)}, 9, {v(vt2)}
    v_and_b32 {v(vt1)}, 3, {v(vI)}
    v_lshl_add_u32 {v(vKVst)}, {v(vt1)}, 4, {v(vKVst)}
    v_and_b32 {v(vt1)}, 4, {v(vI)}
    v_lshl_add_u32 {v(vKVst)}, {v(vt1)}, 5, {v(vKVst)}
    s_lshl_b32 {s(t0)}, {s(t2)}, 10
    s_lshl_b32 {s(t1)}, {s(t3)}, 8
    s_add_u32 {s(t0)}, {s(t0)}, {s(t1)}
    s_lshl_b32 {s(t1)}, {s(t4)}, 6
    s_add_u32 {s(t0)}, {s(t0)}, {s(t1)}
    v_add_u32 {v(vKVst)}, {s(t0)}, {v(vKVst)}
    v_mov_b32 {v(vPad)}, 0x3f803f80
    v_mov_b32 {v(vPad+1)}, 0x00003f80
    s_mov_b32 {s(sPadM)}, 0
    s_mov_b32 {s(sPadM+1)}, 0xffff0000
    s_mov_b32 exec_lo, 0xff00ff00
    s_mov_b32 exec_hi, 0xff00ff00
    v_mov_b32 {v(vKVst)}, {OOB}
    s_mov_b64 exec, -1
    s_branch {le}
    {lv}:''')
    a(f'''v_lshlrev_b32 {v(vKVst)}, 3, {v(vGp)}
    v_lshl_add_u32 {v(vKVst)}, {v(vI)}, 4, {v(vKVst)}
    s_lshl_b32 {s(t0)}, {s(sHQ)}, 9
    s_lshl_b32 {s(t1)}, {s(t2)}, 8
    s_add_u32 {s(t0)}, {s(t0)}, {s(t1)}
    s_add_u32 {s(t0)}, {s(t0)}, 2048
    v_add_u32 {v(vKVst)}, {s(t0)}, {v(vKVst)}
    v_mov_b32 {v(vKown)}, {L_KOWN + 512}
    v_mov_b32 {v(vPad)}, 0
    v_mov_b32 {v(vPad+1)}, 0
    s_mov_b32 exec_lo, 0x10001000
    s_mov_b32 exec_hi, 0x10001000
    v_mov_b32 {v(vPad)}, 0x3f803f80
    v_mov_b32 {v(vPad+1)}, 0x3f803f80
    s_mov_b32 {s(sPadM)}, 0xf000f000
    s_mov_b32 {s(sPadM+1)}, 0xf000f000
    s_mov_b32 exec_lo, 0
    s_mov_b32 exec_hi, -1
    v_mov_b32 {v(vKVst)}, {OOB}
    s_mov_b64 exec, -1
    {le}:''')
    a(f'''s_cmp_eq_u32 {s(t2)}, 0
    s_cselect_b64 {s(sPadM,2)}, 0, {s(sPadM,2)}''')
    for i in range(8): a(f's_mul_i32 {s(sXR+i)}, {s(sXR+i)}, 912')
    vHW = V.alloc(8)
    for i in range(8): a(f'v_add_u32 {v(vHW+i)}, {s(sXR+i)}, {v(vL16)}')
    for i in range(8): a(f'v_add_u32 {v(vHW+i)}, {L_H1}, {v(vHW+i)}')
    S.rel(sXR, 8)
    sKVo = S.alloc(); sFl = S.alloc()
    a(f'''s_lshl_b32 {s(sKVo)}, {s(sT)}, 12
    s_add_u32 {s(sKVo)}, {s(sKVo)}, {WS_KV}
    s_lshl_b32 {s(sFl)}, {s(sL)}, 2
    s_add_u32 {s(sFl)}, {s(sFl)}, {s(sW)}
    s_lshl_b32 {s(sFl)}, {s(sFl)}, 2''')
    a('s_waitcnt lgkmcnt(0)\ns_barrier')
    stamp('prepoll')

    vG = V.alloc(16, 2); vSA = V.alloc(8, 2); vCA = V.alloc(8, 2)
    a(f's_mov_b64 exec, {s(sM56,2)}\ns_mov_b32 {s(t0)}, {WS_MODG}')
    def ld():
        for j, off in enumerate((0, 16, 1792, 1808)):
            a(f'buffer_load_dwordx4 {v(vG+4*j,4)}, {v(vMod)}, {SR(sWS)}, {s(t0)} offen offset:{off} sc1')
    poll(ld, lambda: tagcheck([vG + 2*j + 1 for j in range(8)], vt0))
    stamp('modrcv')
    for j in range(4): unpack(vCA + 2*j, vG + 8 + 2*j)
    for j in range(4): a(f'v_pk_add_f32 {v(vCA+2*j,2)}, {v(vCA+2*j,2)}, 1.0 op_sel_hi:[1,0]')
    for j in range(4): unpack(vSA + 2*j, vG + 2*j)
    def modrow(i):
        for q in range(4):
            r = v(vXH + 8*i + 2*q, 2)
            a(f'v_pk_fma_f32 {r}, {r}, {v(vCA+2*q,2)}, {v(vSA+2*q,2)}')
        for q in range(4): a(f'v_cvt_pk_bf16_f32 {v(vXR+4*i+q)}, {v(vXH+8*i+2*q)}, {v(vXH+8*i+2*q+1)}')
        a(f'ds_write_b128 {v(vHW+i)}, {v(vXR+4*i,4)}')
    modrow(0); modrow(1)
    a('s_mov_b64 exec, -1\ns_waitcnt lgkmcnt(0)\ns_barrier')
    vHF = V.alloc(56, 2); vD = V.alloc(4, 2)
    for j in range(14): a(f'ds_read_b128 {v(vHF+4*j,4)}, {v(vHB)} offset:{64*j}')
    lv = a.lab('Lvmm'); le = a.lab('Lmm_e')
    a(f's_cmp_ge_u32 {s(sW)}, 2\ns_cbranch_scc1 {lv}')
    for j in range(14): a(f'v_mfma_f32_16x16x32_bf16 {v(vD,4)}, {ac(4*j,4)}, {v(vHF+4*j,4)}, {v(vD,4) if j else 0}')
    a(f's_branch {le}\n{lv}:')
    for j in range(14): a(f'v_mfma_f32_16x16x32_bf16 {v(vD,4)}, {v(vHF+4*j,4)}, {ac(4*j,4)}, {v(vD,4) if j else 0}')
    a(f'{le}:')
    a(f'''v_cvt_pk_bf16_f32 {v(vG)}, {v(vD)}, {v(vD+1)}
    v_cvt_pk_bf16_f32 {v(vG+1)}, {v(vD+2)}, {v(vD+3)}
    v_cndmask_b32 {v(vG)}, {v(vG)}, {v(vPad)}, {s(sPadM,2)}
    v_cndmask_b32 {v(vG+1)}, {v(vG+1)}, {v(vPad+1)}, {s(sPadM,2)}
    buffer_store_dwordx2 {v(vG,2)}, {v(vKVst)}, {SR(sWS)}, {s(sKVo)} offen sc1
    ds_write_b64 {v(vKown)}, {v(vG,2)}''')
    stamp('kvst')
    a(f's_mov_b64 exec, {s(sM56,2)}')
    for i in range(2, 8): modrow(i)
    a('s_mov_b64 exec, -1')
    V.rel(vHF, 56); V.rel(vD, 4); V.rel(vHB); V.rel(vKVst); V.rel(vKown); V.rel(vPad, 2); V.rel(vMod); V.rel(vHW, 8)
    V.rel(vG, 16); V.rel(vSA, 8); V.rel(vCA, 8); V.rel(vXH, 64); V.rel(vXR, 32); V.rel(vC, 4); S.rel(sPadM, 2)
    a(f'''s_or_b32 {s(t1)}, {s(sTAG)}, {s(sXCC)}
    v_mov_b32 {v(vt3)}, {s(t1)}
    s_add_u32 {s(t0)}, {s(sFl)}, {WS_FKV}
    s_waitcnt vmcnt(0)
    s_mov_b64 exec, 1
    buffer_store_dword {v(vt3)}, off, {SR(sWS)}, {s(t0)} sc1
    s_mov_b64 exec, -1''')
    vQA = V.alloc(2); vQB = V.alloc()
    a(f'''v_lshrrev_b32 {v(vt0)}, 2, {v(vI)}
    v_lshrrev_b32 {v(vt1)}, 1, {v(vGp)}
    v_lshl_add_u32 {v(vt0)}, {v(vt1)}, 2, {v(vt0)}
    v_mul_u32_u24 {v(vt0)}, 448, {v(vt0)}
    v_and_b32 {v(vt2)}, 1, {v(vGp)}
    v_lshl_add_u32 {v(vt0)}, {v(vt2)}, 5, {v(vt0)}
    s_mul_i32 {s(t0)}, {s(sW)}, 56
    v_add3_u32 {v(vQA)}, {v(vt0)}, {v(vSwp8)}, {s(t0)}
    v_add_u32 {v(vQA+1)}, {14*3584}, {v(vQA)}
    v_and_b32 {v(vt0)}, 31, {v(vLane)}
    v_mul_u32_u24 {v(vt0)}, 912, {v(vt0)}
    v_lshl_add_u32 {v(vt0)}, {v(vt1)}, 4, {v(vt0)}
    v_add_u32 {v(vQB)}, {L_H1}, {v(vt0)}''')
    a('s_waitcnt lgkmcnt(0)\ns_barrier')
    NB = 4
    vA = V.alloc(4*NB, 2); vBf = V.alloc(4*NB, 2); vQD = V.alloc(16, 2)
    def qrd(k):
        b = vQA + (k // 14); off = L_WQ + (k % 14) * 3584
        a(f'ds_read_b64_tr_b16 {v(vA+4*(k%NB),2)}, {v(b)} offset:{off}')
        a(f'ds_read_b64_tr_b16 {v(vA+4*(k%NB)+2,2)}, {v(b)} offset:{off+224}')
        a(f'ds_read_b128 {v(vBf+4*(k%NB),4)}, {v(vQB)} offset:{32*k}')
    for k in range(NB - 1): qrd(k)
    for k in range(28):
        if k + NB - 1 < 28: qrd(k + NB - 1)
        a(f'v_mfma_f32_32x32x16_bf16 {v(vQD,16)}, {v(vA+4*(k%NB),4)}, {v(vBf+4*(k%NB),4)}, {v(vQD,16) if k else 0}')
    a(f'''v_and_b32 {v(vt0)}, 7, {v(vLane)}
    v_lshrrev_b32 {v(vt1)}, 5, {v(vLane)}
    v_lshlrev_b32 {v(vt0)}, 4, {v(vt0)}
    v_lshl_add_u32 {v(vt0)}, {v(vt1)}, 7, {v(vt0)}
    v_add_u32 {v(vt0)}, {L_KOWN}, {v(vt0)}''')
    vKo = V.alloc(8, 2); vQp = V.alloc(8, 2)
    a(f'ds_read_b128 {v(vKo,4)}, {v(vt0)}\nds_read_b128 {v(vKo+4,4)}, {v(vt0)} offset:256')
    QS = 1.4426950408889634 * 28 ** -0.5
    a(f's_mov_b32 {s(t2)}, {f32(QS)}')
    for r in range(16): a(f'v_mul_f32 {v(vQD+r)}, {s(t2)}, {v(vQD+r)}')
    for r in range(8): a(f'v_cvt_pk_bf16_f32 {v(vQp+r)}, {v(vQD+2*r)}, {v(vQD+2*r+1)}')
    a(f'''s_mov_b32 exec_lo, 0
    v_mov_b32 {v(vQp+6)}, 0
    v_mov_b32 {v(vQp+7)}, 0
    s_mov_b64 exec, -1''')
    a(f'v_mfma_f32_32x32x16_bf16 {v(vQD,16)}, {v(vKo,4)}, {v(vQp,4)}, 0')
    a(f'v_mfma_f32_32x32x16_bf16 {v(vQD,16)}, {v(vKo+4,4)}, {v(vQp+4,4)}, {v(vQD,16)}')
    a(f'''s_lshl_b32 {s(t0)}, {s(sW)}, 11
    s_add_u32 {s(t0)}, {s(t0)}, {L_QX}
    v_add_u32 {v(vt2)}, {s(t0)}, {v(vL16)}
    ds_write_b128 {v(vt2)}, {v(vQp,4)}
    v_max3_f32 {v(vt0)}, {v(vQD)}, {v(vQD+1)}, {v(vQD+2)}
    v_max_f32 {v(vt0)}, {v(vt0)}, {v(vQD+3)}
    v_mov_b32 {v(vt1)}, {v(vt0)}
    v_permlane32_swap_b32 {v(vt0)}, {v(vt1)}
    v_max_f32 {v(vt0)}, {v(vt0)}, {v(vt1)}
    v_sub_f32 {v(vt0)}, {f32(200.0 if FORCE_SLOW else -40.0)}, {v(vt0)}
    s_mov_b32 exec_lo, 0
    v_cvt_pk_bf16_f32 {v(vQp+6)}, {v(vt0)}, 0
    s_mov_b64 exec, -1
    ds_write_b128 {v(vt2)}, {v(vQp+4,4)} offset:1024''')
    V.rel(vA, 4*NB); V.rel(vBf, 4*NB); V.rel(vQD, 16); V.rel(vKo, 8); V.rel(vQp, 8); V.rel(vQA, 2); V.rel(vQB); V.rel(vSwp8)
    stamp('qdone')

    NKV = 4
    vQ = V.alloc(32, 2); vO = V.alloc(64, 2); vS = V.alloc(32, 2); vP = V.alloc(8, 2); vKV = V.alloc(16*NKV, 2)
    vRB = V.alloc(3); vWOa = V.alloc()
    sKVb = S.alloc(); sWOo = S.alloc(); sWDo = S.alloc(); sW1o = S.alloc(); sW1m = S.alloc(); sTH = S.alloc(); sNB = S.alloc()
    a(f'''s_lshl_b32 {s(sKVb)}, {s(sW)}, 16
    s_add_u32 {s(sKVb)}, {s(sKVb)}, {WS_KV}
    s_lshl_b32 {s(t0)}, {s(sW)}, 10
    s_add_u32 {s(t0)}, {s(t0)}, {WS_FKV}''')
    a(f'''s_mul_i32 {s(sWOo)}, {s(sHQ)}, 7
    s_lshl_b32 {s(t1)}, {s(sW)}, 1
    s_add_u32 {s(sWOo)}, {s(sWOo)}, {s(t1)}
    s_lshl_b32 {s(sWOo)}, {s(sWOo)}, 14
    s_add_u32 {s(sWOo)}, {s(sWOo)}, {WS_WO}
    v_and_b32 {v(vt0)}, 1, {v(vGp)}
    v_lshrrev_b32 {v(vt1)}, 1, {v(vGp)}
    v_lshlrev_b32 {v(vt0)}, 14, {v(vt0)}
    v_lshl_add_u32 {v(vt0)}, {v(vt1)}, 8, {v(vt0)}
    v_lshl_add_u32 {v(vWOa)}, {v(vI)}, 4, {v(vt0)}
    s_cmp_ge_u32 {s(sM)}, 7
    s_cselect_b32 {s(sTH)}, 1, 0
    s_cselect_b32 {s(t1)}, 7, 0
    s_sub_u32 {s(sNB)}, {s(sM)}, {s(t1)}
    s_mul_i32 {s(sWDo)}, {s(sNB)}, 112
    s_mul_i32 {s(t1)}, {s(sW)}, 28
    s_add_u32 {s(sWDo)}, {s(sWDo)}, {s(t1)}
    s_lshl_b32 {s(sWDo)}, {s(sWDo)}, 11
    s_add_u32 {s(sWDo)}, {s(sWDo)}, {WS_WD}
    s_cmp_ge_u32 {s(sM)}, 14
    s_cselect_b32 {s(sWDo)}, {OOB}, {s(sWDo)}
    s_mul_i32 {s(sW1m)}, {s(sW)}, 7168
    s_mul_i32 {s(sW1o)}, {s(sM)}, {7*SLOT}
    s_add_u32 {s(sW1o)}, {s(sW1o)}, {s(sW1m)}
    s_add_u32 {s(sW1o)}, {s(sW1o)}, {WS_W1}''')
    a(f'''s_and_b32 {s(t1)}, {s(sW)}, 1
    s_lshl_b32 {s(t1)}, {s(t1)}, 10
    v_add_u32 {v(vWDa+1)}, {s(t1)}, {v(vL16)}
    s_xor_b32 {s(t1)}, {s(t1)}, 1024
    v_add_u32 {v(vWDa)}, {s(t1)}, {v(vL16)}''')
    for i in range(3):
        a(f'''s_add_u32 {s(t1)}, {s(sW)}, {1+i}
        s_and_b32 {s(t1)}, {s(t1)}, 3
        s_mul_i32 {s(t1)}, {s(t1)}, 12288
        s_add_u32 {s(t1)}, {s(t1)}, {L_RB + i*4096}
        v_add_u32 {v(vRB+i)}, {s(t1)}, {v(vL16)}''')
    poll(lambda: a(f'buffer_load_dwordx4 {v(vS,4)}, {v(vL16)}, {SR(sWS)}, {s(t0)} offen sc1'),
         lambda: tagcheck([vS + j for j in range(4)], vt0, mask=True))
    stamp('kvrcv')
    def kvload(kt):
        b = vKV + 16 * (kt % NKV)
        r = []
        if kt: r.append(f's_add_u32 {s(sKVb)}, {s(sKVb)}, 4096')
        for j in range(4): r.append(f'buffer_load_dwordx4 {v(b+4*j,4)}, {v(vL16)}, {SR(sWS)}, {s(sKVb)} offen offset:{1024*j} sc1')
        return r
    for kt in range(NKV - 1):
        for x in kvload(kt): a(x)
    ll = a.lab('Lnoloc')
    a(f'''s_lshr_b32 {s(t1)}, {s(sG)}, 2
    s_cmp_lg_u32 {s(t1)}, {s(sW)}
    s_cbranch_scc1 {ll}
    s_or_b32 {s(t1)}, {s(sTAG)}, {s(sXCC)}
    v_cmp_ne_u32 vcc, {s(t1)}, {v(vS)}
    s_and_b32 {s(t1)}, {s(sG)}, 3
    s_lshl_b32 {s(t1)}, {s(t1)}, 4
    s_lshr_b64 vcc, vcc, {s(t1)}
    s_and_b32 {s(t1)}, vcc_lo, 0xffff
    s_cselect_b32 {s(t1)}, 0, {0 if FORCE_NONLOCAL else 1}
    v_mov_b32 {v(vt0)}, {s(t1)}
    v_mov_b32 {v(vt1)}, {L_LOC}
    ds_write_b32 {v(vt1)}, {v(vt0)}
    {ll}:''')
    a('s_waitcnt lgkmcnt(0)\ns_barrier')
    for i in range(4):
        a(f'''s_add_u32 {s(t1)}, {s(sW)}, {1+i}
        s_and_b32 {s(t1)}, {s(t1)}, 3
        s_lshl_b32 {s(t1)}, {s(t1)}, 11
        s_add_u32 {s(t1)}, {s(t1)}, {L_QX}
        v_add_u32 {v(vt2)}, {s(t1)}, {v(vL16)}
        ds_read_b128 {v(vQ+8*i,4)}, {v(vt2)}
        ds_read_b128 {v(vQ+8*i+4,4)}, {v(vt2)} offset:1024''')
    a(f'v_mov_b32 {v(vt1)}, {L_LOC}\nds_read_b32 {v(vt0)}, {v(vt1)}\nv_readfirstlane_b32 {s(sLOC)}, {v(vt0)}')
    a('s_waitcnt lgkmcnt(0)\ns_barrier')

    stamp('att0')
    if opt.get('touch'):
        a(f'''v_lshlrev_b32 {v(vt2)}, 7, {v(vLane)}
        s_lshl_b32 {s(t0)}, {s(sG)}, 2
        s_add_u32 {s(t0)}, {s(t0)}, {s(sW)}
        s_mul_i32 {s(t0)}, {s(t0)}, {112*1024}
        s_mul_i32 {s(t1)}, {s(sM)}, 7168
        s_add_u32 {s(t0)}, {s(t0)}, {s(t1)}
        s_add_u32 {s(t0)}, {s(t0)}, {WS_HF}
        buffer_load_dword {v(vt3)}, {v(vt2)}, {SR(sWS)}, {s(t0)} offen sc1
        s_lshl_b32 {s(t0)}, {s(sL)}, 13
        s_add_u32 {s(t0)}, {s(t0)}, {WS_O}
        s_mul_i32 {s(t1)}, {s(sL)}, 7168
        s_add_u32 {s(t2)}, {s(t1)}, {WS_X2}
        s_cmp_eq_u32 {s(sW)}, 1
        s_cselect_b32 {s(t0)}, {s(t2)}, {s(t0)}
        s_add_u32 {s(t2)}, {s(t1)}, {WS_H2}
        s_cmp_eq_u32 {s(sW)}, 2
        s_cselect_b32 {s(t0)}, {s(t2)}, {s(t0)}
        buffer_load_dword {v(vt3)}, {v(vt2)}, {SR(sWS)}, {s(t0)} offen sc1
        buffer_load_dword {v(vt3)}, {v(vt2)}, {SR(sOUT)}, {s(t1)} offen sc1''')
    side = []
    for j in range(32):
        g = []
        if j and j % 8 == 0: g.append(f's_add_u32 {s(sWOo)}, {s(sWOo)}, 4096')
        g.append(f'buffer_load_dwordx4 {ac(4*j,4)}, {v(vWOa)}, {SR(sWS)}, {s(sWOo)} offen offset:{(j%8)*512} sc1')
        side.append(g)
    def w1dma(tile, slot):
        r = []
        for j in range(7):
            g = []
            if j % 4 == 0:
                g.append(f's_add_u32 {s(t4)}, {s(sW1o)}, {tile*SLOT + j*1024}')
                g.append(f's_add_u32 m0, {s(sW1m)}, {slot*SLOT + j*1024}')
                g.append('@gap')
            g.append((f'buffer_load_dwordx4 {v(vL16)}, {SR(sWS)}, {s(t4)} offen offset:{(j%4)*1024} sc1 lds', f'w1_{tile}'))
            r.append(g)
        return r
    for tile in range(4): side += w1dma(tile, tile)
    def wdreg(k, b): return (128 + 8*k + 4*b) if k < 16 else (8*(k-16) + 4*b)
    def wdload(k):
        r = []
        for b in range(2):
            g = []
            if k and k % 2 == 0 and b == 0: g.append(f's_add_u32 {s(sWDo)}, {s(sWDo)}, 4096')
            g.append(f'buffer_load_dwordx4 {ac(wdreg(k,b),4)}, {v(vWDa+b)}, {SR(sWS)}, {s(sWDo)} offen offset:{(k%2)*2048} sc1')
            r.append(g)
        return r
    for k in range(16): side += wdload(k)
    if opt.get('noside'): side = side[:opt.get('noside')-1]
    def emit_group(g):
        for x in g:
            if x == '@gap': continue
            if isinstance(x, tuple): a(x[0], w=[x[1]])
            else: a(x)

    def QK(n, c):
        kt, i = divmod(n, 4); b = vKV + 16 * (kt % NKV); d = v(vS + 16 * (n & 1), 16)
        return f'v_mfma_f32_32x32x16_bf16 {d}, {v(b+4*c,4)}, {v(vQ+8*i+4*c,4)}, {d if c else 0}'
    def PV(n, c):
        kt, i = divmod(n, 4); b = vKV + 16 * (kt % NKV); d = v(vO + 16 * i, 16)
        return f'v_mfma_f32_32x32x16_bf16 {d}, {v(b+8+4*c,4)}, {v(vP+4*c,4)}, {d if (kt or c) else 0}'
    def EX(n, r): return f'v_exp_f32 {v(vS+16*(n&1)+r)}, {v(vS+16*(n&1)+r)}'
    def CV(n, r): return f'v_cvt_pk_bf16_f32 {v(vP+r)}, {v(vS+16*(n&1)+2*r)}, {v(vS+16*(n&1)+2*r+1)}'
    def rbwrite(i):
        return [f'ds_write_b128 {v(vRB+i)}, {v(vO+16*i+4*q,4)} offset:{1024*q}' for q in range(4)]
    a(QK(0, 0)); a(QK(0, 1))
    N = 64
    sidx = 0
    first_side = 4; last_side = 58
    for n in range(N):
        kt, i = divmod(n, 4)
        extra = []
        if i >= 1 and kt + NKV - 1 < 16:
            l_ = kvload(kt + NKV - 1)
            if i == 1: extra.append(l_[:3])
            elif i == 2: extra.append(l_[3:4])
            else: extra.append(l_[4:5])
        if n >= first_side:
            want = min(len(side), -(-(n - first_side + 1) * len(side) // (last_side - first_side + 1)))
            while sidx < want: extra.append(side[sidx]); sidx += 1
        if n >= 62: extra.append(rbwrite(n - 62))
        pos = {0: [], 1: [], 2: [], 3: []}
        for j, g in enumerate(extra): pos[(j + 1) % 4 if n < 62 else 2].append(g)
        a(EX(n, 0))
        if n: a(CV(n - 1, 7))
        a(EX(n, 1)); a(EX(n, 2))
        if n: a(PV(n - 1, 1))
        for g in pos[0]: emit_group(g)
        a(EX(n, 3)); a(CV(n, 0)); a(EX(n, 4)); a(CV(n, 1)); a(EX(n, 5))
        if n + 1 < N: a(QK(n + 1, 0))
        for g in pos[1]: emit_group(g)
        a(EX(n, 6)); a(CV(n, 2)); a(EX(n, 7)); a(EX(n, 8)); a(CV(n, 3))
        if n + 1 < N: a(QK(n + 1, 1))
        for g in pos[2]: emit_group(g)
        a(EX(n, 9)); a(EX(n, 10)); a(CV(n, 4)); a(EX(n, 11)); a(EX(n, 12)); a(CV(n, 5))
        a(PV(n, 0))
        for g in pos[3]: emit_group(g)
        a(EX(n, 13)); a(EX(n, 14)); a(CV(n, 6)); a(EX(n, 15))
    assert sidx == len(side)
    a(CV(N - 1, 7))
    for x in rbwrite(2)[:2]: a(x)
    a(PV(N - 1, 1))
    for x in rbwrite(2)[2:]: a(x)
    stamp('attn')
    a(f'''s_mul_i32 {s(t1)}, {s(sW)}, 12288
    s_add_u32 {s(t1)}, {s(t1)}, {L_RB}
    v_add_u32 {v(vRr)}, {s(t1)}, {v(vL16)}''')
    a('s_waitcnt lgkmcnt(0)\ns_barrier')
    for i in range(3):
        for q in range(4): a(f'ds_read_b128 {v(vO+16*i+4*q,4)}, {v(vRr)} offset:{4096*i + 1024*q}')
    vOo = vO + 48
    for i in range(3):
        for r in range(0, 16, 2): a(f'v_pk_add_f32 {v(vOo+r,2)}, {v(vOo+r,2)}, {v(vO+16*i+r,2)}')
    lslow = a.lab('Lslow'); lnorm = a.lab('Lnorm')
    a(f'''v_mov_b32 {v(vt0)}, {v(vOo+12)}
    v_mov_b32 {v(vt1)}, {v(vOo+12)}
    v_permlane32_swap_b32 {v(vt0)}, {v(vt1)}
    v_subrev_u32 {v(vt0)}, {(127-60) << 23}, {v(vt1)}
    v_cmp_le_u32 vcc, {120 << 23}, {v(vt0)}
    s_cbranch_vccnz {lslow}
    {lnorm}:
    v_rcp_f32 {v(vt0)}, {v(vt1)}''')
    sOo = S.alloc()
    a(f'''s_lshl_b32 {s(sOo)}, {s(sT)}, 15
    s_lshl_b32 {s(t1)}, {s(sW)}, 11
    s_add_u32 {s(sOo)}, {s(sOo)}, {s(t1)}
    s_add_u32 {s(sOo)}, {s(sOo)}, {WS_O}
    s_lshl_b32 {s(t1)}, {s(sHQ)}, 13
    s_add_u32 {s(t0)}, {s(sOo)}, {s(t1)}
    s_lshl_b32 {s(t1)}, {s(sHQ)}, 11
    v_add_u32 {v(vt2)}, {s(t1)}, {v(vRr)}''')
    for r in range(16): a(f'v_mul_f32 {v(vOo+r)}, {v(vOo+r)}, {v(vt0)}')
    for r in range(8): a(f'v_cvt_pk_bf16_f32 {v(vP+r)}, {v(vOo+2*r)}, {v(vOo+2*r+1)}')
    a(f'''buffer_store_dwordx4 {v(vP,4)}, {v(vL16)}, {SR(sWS)}, {s(t0)} offen
    buffer_store_dwordx4 {v(vP+4,4)}, {v(vL16)}, {SR(sWS)}, {s(t0)} offen offset:1024
    ds_write_b128 {v(vt2)}, {v(vP,4)}
    ds_write_b128 {v(vt2)}, {v(vP+4,4)} offset:1024
    s_add_u32 {s(t0)}, {s(sFl)}, {WS_FO}''')
    signal(t0, True)
    def slowpath(vOo=vOo, vQ=vQ, vS=vS, vP=vP, vKV=vKV):
        qo = vQ + 24; mx = vt0
        a(f'''{lslow}:
        s_mov_b32 exec_lo, 0
        v_mov_b32 {v(qo+6)}, 0
        v_mov_b32 {v(qo+7)}, 0
        s_mov_b64 exec, -1
        v_mov_b32 {v(mx)}, 0xff800000
        s_mov_b32 {s(t0)}, {WS_KV}''')
        lp = a.lab('Lsl1')
        a(f'''{lp}:
        buffer_load_dwordx4 {v(vKV,4)}, {v(vL16)}, {SR(sWS)}, {s(t0)} offen sc1
        buffer_load_dwordx4 {v(vKV+4,4)}, {v(vL16)}, {SR(sWS)}, {s(t0)} offen offset:1024 sc1
        v_mfma_f32_32x32x16_bf16 {v(vS,16)}, {v(vKV,4)}, {v(qo,4)}, 0
        v_mfma_f32_32x32x16_bf16 {v(vS,16)}, {v(vKV+4,4)}, {v(qo+4,4)}, {v(vS,16)}''')
        for r in range(0, 16, 2): a(f'v_max3_f32 {v(mx)}, {v(mx)}, {v(vS+r)}, {v(vS+r+1)}')
        a(f'''s_add_u32 {s(t0)}, {s(t0)}, 4096
        s_cmp_lt_u32 {s(t0)}, {WS_KV + 64*4096}
        s_cbranch_scc1 {lp}
        v_mov_b32 {v(vt1)}, {v(mx)}
        v_permlane32_swap_b32 {v(mx)}, {v(vt1)}
        v_max_f32 {v(mx)}, {v(mx)}, {v(vt1)}
        v_sub_f32 {v(mx)}, 0, {v(mx)}
        v_and_b32 {v(vt1)}, 0xffff0000, {v(mx)}
        v_sub_f32 {v(vt2)}, {v(mx)}, {v(vt1)}
        v_and_b32 {v(vt3)}, 0xffff0000, {v(vt2)}
        v_sub_f32 {v(vt2)}, {v(vt2)}, {v(vt3)}
        s_mov_b32 exec_lo, 0
        v_cvt_pk_bf16_f32 {v(qo+6)}, {v(vt1)}, {v(vt3)}
        v_cvt_pk_bf16_f32 {v(qo+7)}, {v(vt2)}, 0
        s_mov_b64 exec, -1''')
        for r in range(16): a(f'v_mov_b32 {v(vOo+r)}, 0')
        lp = a.lab('Lsl2')
        a(f's_mov_b32 {s(t0)}, {WS_KV}\n{lp}:')
        for j in range(4): a(f'buffer_load_dwordx4 {v(vKV+4*j,4)}, {v(vL16)}, {SR(sWS)}, {s(t0)} offen offset:{1024*j} sc1')
        a(f'''v_mfma_f32_32x32x16_bf16 {v(vS,16)}, {v(vKV,4)}, {v(qo,4)}, 0
        v_mfma_f32_32x32x16_bf16 {v(vS,16)}, {v(vKV+4,4)}, {v(qo+4,4)}, {v(vS,16)}''')
        for r in range(16): a(EX(0, r))
        for r in range(8): a(CV(0, r))
        a(f'''v_mfma_f32_32x32x16_bf16 {v(vOo,16)}, {v(vKV+8,4)}, {v(vP,4)}, {v(vOo,16)}
        v_mfma_f32_32x32x16_bf16 {v(vOo,16)}, {v(vKV+12,4)}, {v(vP+4,4)}, {v(vOo,16)}
        s_add_u32 {s(t0)}, {s(t0)}, 4096
        s_cmp_lt_u32 {s(t0)}, {WS_KV + 64*4096}
        s_nop 7
        s_nop 7
        s_cbranch_scc1 {lp}
        v_mov_b32 {v(vt0)}, {v(vOo+12)}
        v_mov_b32 {v(vt1)}, {v(vOo+12)}
        v_permlane32_swap_b32 {v(vt0)}, {v(vt1)}
        s_branch {lnorm}''')
    V.rel(vQ, 32); V.rel(vO, 64); V.rel(vS, 32); V.rel(vP, 8); V.rel(vKV, 16*NKV); V.rel(vRB, 3); V.rel(vWOa)
    S.rel(sKVb); S.rel(sWOo); S.rel(sKVo)
    stamp('opub')

    def modvec_load(dst, vaddr, soff):
        for j, off in enumerate((0, 16, 64, 80)):
            a(f'buffer_load_dwordx4 {v(dst+4*j,4)}, {v(vaddr)}, {SR(sWS)}, {s(soff)} offen offset:{off} sc1')
    vMG = V.alloc(48, 2); vXr = V.alloc(8, 2)
    sCol = S.alloc()
    a(f'''v_lshrrev_b32 {v(vt0)}, 5, {v(vLane)}
    v_lshlrev_b32 {v(vHi32)}, 5, {v(vt0)}
    v_and_b32 {v(vt1)}, 31, {v(vLane)}
    v_mul_u32_u24 {v(vt1)}, 896, {v(vt1)}
    v_lshl_add_u32 {v(vRow)}, {v(vt0)}, 4, {v(vt1)}
    s_mul_i32 {s(sCol)}, {s(sHQ)}, 112
    s_lshl_b32 {s(t1)}, {s(sW)}, 5
    s_add_u32 {s(sCol)}, {s(sCol)}, {s(t1)}
    s_mul_i32 {s(t0)}, {s(sT)}, {32*896}
    s_lshl_b32 {s(t1)}, {s(sCol)}, 1
    s_add_u32 {s(t0)}, {s(t0)}, {s(t1)}
    buffer_load_dwordx4 {v(vXr,4)}, {v(vRow)}, {SR(sX)}, {s(t0)} offen
    buffer_load_dwordx4 {v(vXr+4,4)}, {v(vRow)}, {SR(sX)}, {s(t0)} offen offset:32
    s_lshl_b32 {s(t1)}, {s(sCol)}, 2
    s_add_u32 {s(t2)}, {s(t1)}, {WS_MODG + 4*896}
    s_add_u32 {s(t3)}, {s(t1)}, {WS_MODG + 4*1344}
    s_add_u32 {s(t1)}, {s(t1)}, {WS_MODG + 4*1792}''')
    def ld():
        modvec_load(vMG, vHi32, t2); modvec_load(vMG + 16, vHi32, t3); modvec_load(vMG + 32, vHi32, t1)
    poll(ld, lambda: tagcheck([vMG + 2*j + 1 for j in range(24)], vt0))
    a(f'''s_lshl_b32 {s(t0)}, {s(sT)}, 6
    s_lshl_b32 {s(t1)}, {s(sW)}, 2
    s_add_u32 {s(t0)}, {s(t0)}, {s(t1)}
    s_add_u32 {s(t0)}, {s(t0)}, {WS_FO}
    v_and_b32 {v(vt2)}, 3, {v(vLane)}
    v_lshlrev_b32 {v(vt2)}, 4, {v(vt2)}''')
    poll(lambda: a(f'buffer_load_dword {v(vt1)}, {v(vt2)}, {SR(sWS)}, {s(t0)} offen sc1'),
         lambda: a(f'v_cmp_ne_u32 vcc, {v(vTag)}, {v(vt1)}'))
    acquire()
    a(f's_mul_i32 {s(t2)}, {s(sW)}, 12288\ns_add_u32 {s(t2)}, {s(t2)}, {L_RB}')
    for j in range(1, 4):
        a(f'''s_add_u32 {s(t0)}, {s(sHQ)}, {j}
        s_and_b32 {s(t0)}, {s(t0)}, 3
        s_lshl_b32 {s(t1)}, {s(t0)}, 11
        s_add_u32 m0, {s(t1)}, {s(t2)}
        s_lshl_b32 {s(t0)}, {s(t0)}, 13
        s_add_u32 {s(t0)}, {s(t0)}, {s(sOo)}''')
        a(f'buffer_load_dwordx4 {v(vL16)}, {SR(sWS)}, {s(t0)} offen sc1 lds', w=['oimg'])
        a(f'buffer_load_dwordx4 {v(vL16)}, {SR(sWS)}, {s(t0)} offen offset:1024 sc1 lds', w=['oimg'])
    vGA = V.alloc(16, 2); vSB = V.alloc(16, 2); vCB = V.alloc(16, 2); vX2 = V.alloc(16, 2)
    for j in range(8):
        unpack(vGA + 2*j, vMG + 2*j); unpack(vSB + 2*j, vMG + 16 + 2*j); unpack(vCB + 2*j, vMG + 32 + 2*j); unpack(vX2 + 2*j, vXr + j)
    for j in range(8): a(f'v_pk_add_f32 {v(vCB+2*j,2)}, {v(vCB+2*j,2)}, 1.0 op_sel_hi:[1,0]')
    V.rel(vMG, 48)
    vOB = V.alloc()
    a(f'v_add_u32 {v(vOB)}, {L_RB}, {v(vL16)}')
    a.need('oimg')
    a('s_waitcnt lgkmcnt(0)\ns_barrier')
    stamp('orcv')
    NB = 6
    vBf = V.alloc(4*NB, 2); vAc = V.alloc(16, 2)
    def ord_(k): a(f'ds_read_b128 {v(vBf+4*(k%NB),4)}, {v(vOB)} offset:{((k>>1)&3)*12288 + (k>>3)*2048 + (k&1)*1024}')
    for k in range(NB - 1): ord_(k)
    for k in range(32):
        if k + NB - 1 < 32: ord_(k + NB - 1)
        a(f'v_mfma_f32_32x32x16_bf16 {v(vAc,16)}, {ac(4*k,4)}, {v(vBf+4*(k%NB),4)}, {v(vAc,16) if k else 0}')
    sFr = S.alloc(); sFr1 = S.alloc()
    a(f'''s_mul_i32 {s(sFr)}, {s(sT)}, 28672
    s_lshl_b32 {s(t1)}, {s(sCol)}, 6
    s_add_u32 {s(sFr)}, {s(sFr)}, {s(t1)}
    s_add_u32 {s(sFr1)}, {s(sFr)}, 1024
    s_cmp_eq_u32 {s(sW)}, 3
    s_cselect_b32 {s(sFr1)}, {OOB - WS_X2}, {s(sFr1)}
    s_add_u32 {s(t0)}, {s(sFr)}, {WS_X2}
    s_add_u32 {s(t1)}, {s(sFr1)}, {WS_X2}
    s_lshl_b32 {s(t2)}, {s(sW)}, 8
    s_add_u32 {s(t2)}, {s(t2)}, {L_RB + 3*12288 + 8192}
    v_lshl_add_u32 {v(vt2)}, {v(vLane)}, 2, {s(t2)}''')
    for r in range(0, 16, 2): a(f'v_pk_fma_f32 {v(vX2+r,2)}, {v(vAc+r,2)}, {v(vGA+r,2)}, {v(vX2+r,2)}')
    lz = a.lab('Lnz')
    a(f's_cmp_lg_u32 {s(sW)}, 3\ns_cbranch_scc1 {lz}')
    for r in range(8, 16): a(f'v_mov_b32 {v(vX2+r)}, 0')
    a(f'{lz}:')
    vq = vGA
    a(f'v_pk_add_f32 {v(vq,2)}, {v(vX2,2)}, {v(vX2+2,2)}\nv_pk_mul_f32 {v(vq+2,2)}, {v(vX2,2)}, {v(vX2,2)}')
    for r in range(2, 16, 2):
        if r > 2: a(f'v_pk_add_f32 {v(vq,2)}, {v(vq,2)}, {v(vX2+r,2)}')
        a(f'v_pk_fma_f32 {v(vq+2,2)}, {v(vX2+r,2)}, {v(vX2+r,2)}, {v(vq+2,2)}')
    a(f'''v_add_f32 {v(vq)}, {v(vq)}, {v(vq+1)}
    v_add_f32 {v(vq+2)}, {v(vq+2)}, {v(vq+3)}
    v_permlane32_swap_b32 {v(vq)}, {v(vq+2)}
    v_add_f32 {v(vq)}, {v(vq)}, {v(vq+2)}
    ds_write_b32 {v(vt2)}, {v(vq)}''')
    for r in range(8): a(f'v_cvt_pk_bf16_f32 {v(vXr+r)}, {v(vX2+2*r)}, {v(vX2+2*r+1)}')
    a(f'v_lshlrev_b32 {v(vt2)}, 2, {v(vLane)}\nv_add_u32 {v(vt2)}, {L_RB + 3*12288 + 8192}, {v(vt2)}')
    a('s_waitcnt lgkmcnt(0)\ns_barrier')
    for j in range(4): a(f'ds_read_b32 {v(vq+4+j)}, {v(vt2)} offset:{256*j}')
    a(f'''s_lshl_b32 {s(t2)}, {s(sT)}, 11
    s_add_u32 {s(t2)}, {s(t2)}, {WS_ST}
    s_lshr_b32 {s(t3)}, {s(sHQ)}, 1
    s_lshl_b32 {s(t3)}, {s(t3)}, 10
    s_and_b32 {s(t5)}, {s(sHQ)}, 1
    s_lshl_b32 {s(t5)}, {s(t5)}, 3
    s_add_u32 {s(t3)}, {s(t3)}, {s(t5)}
    s_add_u32 {s(t3)}, {s(t3)}, {s(t2)}
    s_cmp_eq_u32 {s(sW)}, 0
    s_cselect_b32 {s(t3)}, {s(t3)}, {OOB}
    v_mov_b32 {v(vq+1)}, {v(vTag)}
    v_add_f32 {v(vq+4)}, {v(vq+4)}, {v(vq+5)}
    v_add_f32 {v(vq+6)}, {v(vq+6)}, {v(vq+7)}
    v_add_f32 {v(vq)}, {v(vq+4)}, {v(vq+6)}''')
    ln = a.lab('Lst_nl'); le = a.lab('Lst_e')
    a(f'''s_cmp_eq_u32 {s(sLOC)}, 0
    s_cbranch_scc1 {ln}
    buffer_store_dwordx2 {v(vq,2)}, {v(vL16)}, {SR(sWS)}, {s(t3)} offen
    {le}:''')
    cold.append((ln, le, f'buffer_store_dwordx2 {v(vq,2)}, {v(vL16)}, {SR(sWS)}, {s(t3)} offen sc1'))
    a(f'''buffer_store_dwordx4 {v(vXr,4)}, {v(vL16)}, {SR(sWS)}, {s(t0)} offen
    buffer_store_dwordx4 {v(vXr+4,4)}, {v(vL16)}, {SR(sWS)}, {s(t1)} offen''')
    def ld():
        a(f'buffer_load_dwordx4 {v(vq+8,4)}, {v(vL16)}, {SR(sWS)}, {s(t2)} offen sc1')
        a(f'buffer_load_dwordx4 {v(vq+12,4)}, {v(vL16)}, {SR(sWS)}, {s(t2)} offen offset:1024 sc1')
    poll(ld, lambda: tagcheck([vq + 9, vq + 11, vq + 13, vq + 15], vt0))
    a(f'''v_add_f32 {v(vq+8)}, {v(vq+8)}, {v(vq+10)}
    v_add_f32 {v(vq+12)}, {v(vq+12)}, {v(vq+14)}
    v_add_f32 {v(vq+8)}, {v(vq+8)}, {v(vq+12)}
    v_mul_f32 {v(vq+8)}, {f32(1/448)}, {v(vq+8)}
    v_mov_b32 {v(vq+9)}, {v(vq+8)}
    v_permlane32_swap_b32 {v(vq+8)}, {v(vq+9)}
    v_fma_f32 {v(vq+9)}, -{v(vq+8)}, {v(vq+8)}, {v(vq+9)}
    v_max_f32 {v(vq+9)}, 0, {v(vq+9)}
    v_add_f32 {v(vq+9)}, {f32(1e-5)}, {v(vq+9)}
    v_rsq_f32 {v(vq+10)}, {v(vq+9)}
    s_add_u32 {s(t0)}, {s(sFr)}, {WS_H2}
    v_mul_f32 {v(vq+11)}, -{v(vq+8)}, {v(vq+10)}
    s_add_u32 {s(t1)}, {s(sFr1)}, {WS_H2}''')
    for r in range(0, 16, 2):
        a(f'v_pk_fma_f32 {v(vX2+r,2)}, {v(vX2+r,2)}, {v(vq+10,2)}, {v(vq+10,2)} op_sel:[0,0,1] op_sel_hi:[1,0,1]')
    for r in range(0, 16, 2): a(f'v_pk_fma_f32 {v(vX2+r,2)}, {v(vX2+r,2)}, {v(vCB+r,2)}, {v(vSB+r,2)}')
    for r in range(8): a(f'v_cvt_pk_bf16_f32 {v(vAc+r)}, {v(vX2+2*r)}, {v(vX2+2*r+1)}')
    a(f'''buffer_store_dwordx4 {v(vAc,4)}, {v(vL16)}, {SR(sWS)}, {s(t0)} offen
    buffer_store_dwordx4 {v(vAc+4,4)}, {v(vL16)}, {SR(sWS)}, {s(t1)} offen
    s_add_u32 {s(t0)}, {s(sFl)}, {WS_FX}''')
    signal(t0, True)
    V.rel(vBf, 4*NB); V.rel(vAc, 16); V.rel(vGA, 16); V.rel(vSB, 16); V.rel(vCB, 16); V.rel(vX2, 16); V.rel(vXr, 8); V.rel(vOB)
    S.rel(sFr); S.rel(sFr1); S.rel(sCol); S.rel(sOo)
    stamp('h2pub')

    vB = V.alloc(112, 2); NA = 8
    vA = V.alloc(4*NA, 2); vAcc = V.alloc(64, 2); vHp = V.alloc(8, 2); vA1 = V.alloc(3)
    sTp = S.alloc(); sHo = S.alloc()
    a(f'''s_lshl_b32 {s(sTp)}, {s(sG)}, 2
    s_add_u32 {s(sTp)}, {s(sTp)}, {s(sW)}
    s_lshl_b32 {s(t0)}, {s(sTp)}, 6
    s_add_u32 {s(t0)}, {s(t0)}, {WS_FX}
    v_lshlrev_b32 {v(vt2)}, 2, {v(vI)}
    s_mul_i32 {s(t1)}, {s(sTp)}, 28672
    s_add_u32 {s(t1)}, {s(t1)}, {WS_H2}
    s_mul_i32 {s(sHo)}, {s(sTp)}, {112*1024}
    s_mul_i32 {s(t2)}, {s(sM)}, 7168
    s_add_u32 {s(sHo)}, {s(sHo)}, {s(t2)}
    s_add_u32 {s(sHo)}, {s(sHo)}, {WS_HF}
    v_mov_b32 {v(vA1)}, {v(vL16)}
    v_add_u32 {v(vA1+1)}, {2*SLOT}, {v(vL16)}
    v_add_u32 {v(vA1+2)}, {4*SLOT}, {v(vL16)}''')
    poll(lambda: a(f'buffer_load_dword {v(vt1)}, {v(vt2)}, {SR(sWS)}, {s(t0)} offen sc1'),
         lambda: a(f'v_cmp_ne_u32 vcc, {v(vTag)}, {v(vt1)}'))
    acquire()
    stamp('h2rcv')
    for k in range(28):
        if k and k % 4 == 0: a(f's_add_u32 {s(t1)}, {s(t1)}, 4096')
        a(f'buffer_load_dwordx4 {v(vB+4*k,4)}, {v(vL16)}, {SR(sWS)}, {s(t1)} offen offset:{(k%4)*1024} sc1')
    for g in w1dma(4, 4): emit_group(g)
    slot_of = {0: 0, 1: 1, 2: 2, 3: 3, 4: 4, 5: 0, 6: 1}
    seq = [(j, k) for k in range(28) for j in range(3)] + [(j, k) for j in range(3, 7) for k in range(28)]
    def ard(n):
        j, k = seq[n]; sl = slot_of[j]
        a(f'ds_read_b128 {v(vA+4*(n%NA),4)}, {v(vA1 + sl//2)} offset:{(sl%2)*SLOT + k*1024}')
    def epi(j):
        c = vAcc + 16 * (j % 4); h = vHp + 4 * (j & 1)
        r = []
        for q in range(8): r.append(f'v_max_f32 {v(c+q)}, 0, {v(c+q)}')
        for q in range(8): r.append(f'v_mul_f32 {v(c+q)}, {v(c+q)}, {v(c+8+q)}')
        for q in range(4): r.append(f'v_cvt_pk_bf16_f32 {v(h+q)}, {v(c+2*q)}, {v(c+2*q+1)}')
        if j == 4: r.append(f's_add_u32 {s(sHo)}, {s(sHo)}, 4096')
        r.append(f'buffer_store_dwordx4 {v(h,4)}, {v(vL16)}, {SR(sWS)}, {s(sHo)} offen offset:{(j%4)*1024}')
        return r
    fill = {}
    def spread(items, start, per):
        n = start
        while items:
            fill.setdefault(n, []).extend(items[:per]); items = items[per:]; n += 1
        return n
    wdl = []
    for k in range(16, 28):
        for g in wdload(k): wdl.append(g)
    for j, g in enumerate(wdl): fill.setdefault(30 + 2*j, []).extend(g)
    e = spread(epi(0), 84 + 4, 3); e = spread(epi(1), e, 3); e = spread(epi(2), e, 3)
    assert e <= 112
    d56 = w1dma(5, 0) + w1dma(6, 1)
    for j, g in enumerate(d56): fill.setdefault(85 + j, []).extend(g)
    spread(epi(3), 112 + 5, 2); spread(epi(4), 140 + 5, 2); spread(epi(5), 168 + 5, 2)
    PD = NA - 2
    issued = 0
    def limit(n):
        return 140 if n < 140 - PD else 196
    for n in range(196):
        if n in (1, 84, 140 - PD): stamp(f'e{n}')
        if n == 84:
            a.need('w1_4')
            a('s_barrier')
        if n == 140 - PD:
            a.need('w1_5', 'w1_6')
            a('s_barrier')
        while issued < min(196, n + PD + 1, limit(n)): ard(issued); issued += 1
        j, k = seq[n]; d = v(vAcc + 16 * (j % 4), 16)
        a(f'v_mfma_f32_32x32x16_bf16 {d}, {v(vA+4*(n%NA),4)}, {v(vB+4*k,4)}, {d if k else 0}')
        emit_group(fill.get(n, []))
    for x in epi(6): a(x)
    stamp('e196')
    a(f's_add_u32 {s(t0)}, {s(sFl)}, {WS_FH}')
    signal(t0, True)
    V.rel(vB, 112); V.rel(vA, 4*NA); V.rel(vAcc, 64); V.rel(vHp, 8); V.rel(vA1, 3)
    S.rel(sTp); S.rel(sHo)
    stamp('hpub')
    if TS:
        for j in range(2): a(f'v_writelane_b32 {v(vTS)}, s100, {nts[0]-1+j}')
    a(f's_cmp_ge_u32 {s(sM)}, 14\ns_cbranch_scc1 Lfin')

    vAcc = V.alloc(64, 2); NH = 16
    vH = V.alloc(8*NH, 2); vGB = V.alloc(16, 2); vXr = V.alloc(8, 2); vRB = V.alloc(3)
    sH0 = S.alloc(); sH1 = S.alloc(); sTo = S.alloc(); sCol = S.alloc()
    a(f'''s_lshl_b32 {s(sTo)}, {s(sG)}, 1
    s_add_u32 {s(sTo)}, {s(sTo)}, {s(sTH)}
    s_lshl_b32 {s(sTo)}, {s(sTo)}, 1
    s_lshr_b32 {s(t1)}, {s(sW)}, 1
    s_add_u32 {s(sTo)}, {s(sTo)}, {s(t1)}
    s_mul_i32 {s(t2)}, {s(sW)}, 28672
    s_add_u32 {s(t2)}, {s(t2)}, {WS_HF}
    s_mul_i32 {s(sH1)}, {s(sTo)}, {112*1024}
    s_add_u32 {s(sH1)}, {s(sH1)}, {s(t2)}
    s_xor_b32 {s(t1)}, {s(sTo)}, 1
    s_mul_i32 {s(sH0)}, {s(t1)}, {112*1024}
    s_add_u32 {s(sH0)}, {s(sH0)}, {s(t2)}
    s_lshl_b32 {s(sCol)}, {s(sNB)}, 1
    s_and_b32 {s(t1)}, {s(sW)}, 1
    s_add_u32 {s(sCol)}, {s(sCol)}, {s(t1)}
    s_lshl_b32 {s(sCol)}, {s(sCol)}, 5
    s_mul_i32 {s(t1)}, {s(sTo)}, 28672
    s_lshl_b32 {s(t2)}, {s(sCol)}, 6
    s_add_u32 {s(t1)}, {s(t1)}, {s(t2)}
    s_add_u32 {s(t1)}, {s(t1)}, {WS_X2}
    buffer_load_dwordx4 {v(vXr,4)}, {v(vL16)}, {SR(sWS)}, {s(t1)} offen sc1
    buffer_load_dwordx4 {v(vXr+4,4)}, {v(vL16)}, {SR(sWS)}, {s(t1)} offen offset:1024 sc1
    s_lshl_b32 {s(t2)}, {s(sCol)}, 2
    s_add_u32 {s(t2)}, {s(t2)}, {WS_MODG + 4*2240}''')
    poll(lambda: modvec_load(vGB, vHi32, t2), lambda: tagcheck([vGB + 2*j + 1 for j in range(8)], vt0))
    a(f'''s_lshl_b32 {s(t0)}, {s(sG)}, 2
    s_add_u32 {s(t0)}, {s(t0)}, {s(sW)}
    s_lshl_b32 {s(t0)}, {s(t0)}, 6
    s_lshl_b32 {s(t1)}, {s(sTH)}, 3
    s_add_u32 {s(t0)}, {s(t0)}, {s(t1)}
    s_add_u32 {s(t0)}, {s(t0)}, {WS_FH}
    v_and_b32 {v(vt2)}, 3, {v(vLane)}
    v_lshlrev_b32 {v(vt2)}, 4, {v(vt2)}
    v_and_b32 {v(vt1)}, 4, {v(vLane)}
    v_add_u32 {v(vt2)}, {v(vt2)}, {v(vt1)}''')
    for i in range(3):
        a(f'''s_xor_b32 {s(t1)}, {s(sW)}, {i ^ 3}
        s_mul_i32 {s(t1)}, {s(t1)}, 12288
        s_add_u32 {s(t1)}, {s(t1)}, {L_RB + i*4096}
        v_add_u32 {v(vRB+i)}, {s(t1)}, {v(vL16)}''')
    poll(lambda: a(f'buffer_load_dword {v(vt1)}, {v(vt2)}, {SR(sWS)}, {s(t0)} offen sc1'),
         lambda: a(f'v_cmp_ne_u32 vcc, {v(vTag)}, {v(vt1)}'))
    acquire()
    stamp('hrcv')
    def hload(k):
        if k and k % 4 == 0: a(f's_add_u32 {s(sH0)}, {s(sH0)}, 4096\ns_add_u32 {s(sH1)}, {s(sH1)}, 4096')
        for t_, so in ((0, sH0), (1, sH1)):
            a(f'buffer_load_dwordx4 {v(vH+8*(k%NH)+4*t_,4)}, {v(vL16)}, {SR(sWS)}, {s(so)} offen offset:{(k%4)*1024} sc1')
    for k in range(NH): hload(k)
    for k in range(28):
        for t_ in range(2):
            for b in range(2):
                d = v(vAcc + 16 * (2*t_ + b), 16)
                a(f'v_mfma_f32_32x32x16_bf16 {d}, {ac(wdreg(k,b),4)}, {v(vH+8*(k%NH)+4*t_,4)}, {d if k else 0}')
        if k + NH < 28: hload(k + NH)
    stamp('f_mm')
    vGf = vH; vXf = vH + 16
    for j in range(8): unpack(vGf + 2*j, vGB + 2*j)
    for i in range(3):
        for q in range(4): a(f'ds_write_b128 {v(vRB+i)}, {v(vAcc+16*i+4*q,4)} offset:{1024*q}')
    for j in range(8): unpack(vXf + 2*j, vXr + j)
    a(f'''s_mul_i32 {s(t0)}, {s(sTo)}, {32*896}
    s_lshl_b32 {s(t1)}, {s(sCol)}, 1
    s_add_u32 {s(t0)}, {s(t0)}, {s(t1)}''')
    a('s_waitcnt lgkmcnt(0)\ns_barrier')
    for i in range(3):
        for q in range(4): a(f'ds_read_b128 {v(vAcc+16*i+4*q,4)}, {v(vRr)} offset:{4096*i + 1024*q}')
    vOo = vAcc + 48
    for i in range(3):
        for r in range(0, 16, 2): a(f'v_pk_add_f32 {v(vOo+r,2)}, {v(vOo+r,2)}, {v(vAcc+16*i+r,2)}')
    for r in range(0, 16, 2): a(f'v_pk_fma_f32 {v(vOo+r,2)}, {v(vOo+r,2)}, {v(vGf+r,2)}, {v(vXf+r,2)}')
    for r in range(8): a(f'v_cvt_pk_bf16_f32 {v(vXr+r)}, {v(vOo+2*r)}, {v(vOo+2*r+1)}')
    a(f'''buffer_store_dwordx4 {v(vXr,4)}, {v(vRow)}, {SR(sOUT)}, {s(t0)} offen
    buffer_store_dwordx4 {v(vXr+4,4)}, {v(vRow)}, {SR(sOUT)}, {s(t0)} offen offset:32''')
    a('Lfin:')
    a(f'''s_cmp_lg_u32 {s(sFl)}, 0
    s_cbranch_scc1 Lnoep
    s_mov_b64 exec, 1
    buffer_store_dword {v(vTag)}, off, {SR(sWS)}, 0
    s_mov_b64 exec, -1
    Lnoep:''')
    if TS:
        a('s_waitcnt vmcnt(0)')
        stamp('end')
        a(f'v_writelane_b32 {v(vTS)}, s100, {nts[0]-1}')
        a(f'v_writelane_b32 {v(vTS)}, {s(sB)}, 31')
        a(f'v_writelane_b32 {v(vTS)}, {s(sLOC)}, 30')
        a(f's_lshl_b32 {s(t0)}, {s(sFl)}, 5\ns_add_u32 {s(t0)}, {s(t0)}, {WS_TS}\nv_lshlrev_b32 {v(vt0)}, 2, {v(vLane)}\ns_mov_b32 exec_hi, 0')
        a(f'buffer_store_dword {v(vTS)}, {v(vt0)}, {SR(sWS)}, {s(t0)} offen')
    a('Lend:\ns_endpgm')
    slowpath()
    for ln, le, code in cold:
        a(f'{ln}:'); a(code); a(f's_branch {le}')
    body = a.finalize(verbose=opt.get('verbose', False))
    hdr = open('adaLN_cond__grouped_kv_mqa__glu_gated_reglu__prompt.s.ref').read().split('; Override launch')[0]
    text = hdr + f'''; Generated by the author's own generator script (persistent single launch, 256 workgroups, one per CU).
; @launch grid=(256,1,1) block=(256,1,1) lds={LDS_BYTES}
.amdgcn_target "amdgcn-amd-amdhsa--gfx950"
.text
.globl {KNAME}
.p2align 8
.type {KNAME},@function
{KNAME}:
{body}.section .rodata,"a"
.p2align 6
.amdhsa_kernel {KNAME}
  .amdhsa_next_free_vgpr 512
  .amdhsa_next_free_sgpr 102
  .amdhsa_accum_offset 256
  .amdhsa_group_segment_fixed_size 0
  .amdhsa_kernarg_size 112
  .amdhsa_user_sgpr_count 2
  .amdhsa_user_sgpr_kernarg_segment_ptr 1
  .amdhsa_system_sgpr_workgroup_id_x 1
.end_amdhsa_kernel
'''
    if opt.get('verbose'): print('vgpr hi', V.hi, 'sgpr hi', S.hi, 'text bytes', len(text))
    return text, tsnames

if __name__ == '__main__':
    out = sys.argv[1] if len(sys.argv) > 1 else 'adaLN_cond__grouped_kv_mqa__glu_gated_reglu__prompt.s'
    opt = {'verbose': True}
    for x in sys.argv[2:]:
        k, _, val = x.partition('=')
        opt[k] = int(val) if val else True
    t, _ = generate(opt)
    open(out, 'w').write(t)
```

```python
import sys, struct
sys.path.insert(0, 'work')
from asmlib import Asm

KNAME = 'adaLN_cond__grouped_kv_mqa__glu_gated_reglu__prompt_kernel'

WS_EPOCH = 0
WS_MODG = 0x1000
WS_FKV = 0x4000
WS_FO = 0x6000
WS_FX = 0x7000
WS_FH = 0x8000
WS_ST = 0x10000
WS_KV = 0x40000
WS_WO = 0x80000
WS_W1 = 0x100000
WS_WD = 0x410000
WS_O = 0x600000
WS_H2 = 0x800000
WS_X2 = 0xA00000
WS_HF = 0xC00000
WS_TS = 0x1400000
WS_DBG = 0x1500000
WS_SIZE = 0x2000000
OOB = 0x7ff00000

L_WQ = 0
L_SHUF = 0
L_WM = 32768
L_SILU = 49152
L_KVW = 100352
L_H1 = 100352
L_QX = 153600
L_KOWN = 161792
L_LOC = 162816
SLOT = 28672
L_RB = 114688
LDS_BYTES = 163840

def f32(x): return '0x%08x' % struct.unpack('<I', struct.pack('<f', x))[0]

class Regs:
    def __init__(self, kind, n, start=0):
        self.kind = kind; self.free = [i >= start for i in range(n)]; self.hi = 0
    def alloc(self, n=1, align=None):
        if align is None: align = 1 if n == 1 else 2
        i = 0
        while i + n <= len(self.free):
            if i % align == 0 and all(self.free[i:i + n]):
                for j in range(i, i + n): self.free[j] = False
                self.hi = max(self.hi, i + n)
                return i
            i += 1
        raise RuntimeError(f'out of {self.kind} registers ({n})')
    def rel(self, i, n=1):
        for j in range(i, i + n):
            assert not self.free[j], (self.kind, j)
            self.free[j] = True

def rr(k, i, n=1): return f'{k}{i}' if n == 1 else f'{k}[{i}:{i+n-1}]'
def v(i, n=1): return rr('v', i, n)
def ac(i, n=1): return rr('a', i, n)
def s(i, n=1): return rr('s', i, n)

def generate(opt=None):
    opt = dict(opt or {})
    TS = opt.get('ts', False)
    STOP = opt.get('stop', None)
    FORCE_NONLOCAL = opt.get('nonlocal', False)
    FORCE_SLOW = opt.get('slow', False)
    a = Asm()
    V = Regs('v', 256, 1); S = Regs('s', 98, 3)
    sX = S.alloc(4, 4); sWQ = S.alloc(4, 4); sKV = S.alloc(4, 4); sSH = S.alloc(4, 4); sWM = S.alloc(4, 4)
    sWS = S.alloc(4, 4); sOUT = S.alloc(4, 4); sCC = S.alloc(4, 4)
    pWK = S.alloc(4, 4)
    pWO = S.alloc(2, 2); pWG = S.alloc(4, 4); pWD = S.alloc(2, 2)
    sW = S.alloc(); sL = S.alloc(); sT = S.alloc(); sHQ = S.alloc(); sG = S.alloc(); sM = S.alloc()
    sTAG = S.alloc(); sB = S.alloc(); sXCC = S.alloc(); sLOC = S.alloc()
    t0 = S.alloc(); t1 = S.alloc(); t2 = S.alloc(); t3 = S.alloc(); t4 = S.alloc(); t5 = S.alloc()
    sM56 = S.alloc(2, 2)
    nts = [0]
    tsnames = []
    vTS = V.alloc() if TS else None
    def stamp(name):
        if opt.get('padat'):
            if name == 'start': a('s_memrealtime s[98:99]')
            if name == opt['padat']:
                lp = a.lab('Lpad')
                if 'padwg' in opt: a(f's_cmp_lg_u32 s2, {opt["padwg"]}\ns_cbranch_scc1 Lend')
                a(f'{lp}:\ns_memrealtime s[100:101]\ns_sub_u32 s100, s100, s98\ns_cmp_lt_u32 s100, {opt["padto"]}\ns_cbranch_scc1 {lp}')
        if TS:
            assert nts[0] < 30
            if nts[0]: a(f'v_writelane_b32 {v(vTS)}, s100, {nts[0]-1}')
            a(f'{"s_memtime" if opt.get("cyc") else "s_memrealtime"} s[100:101]'); nts[0] += 1; tsnames.append(name)
    def SR(x): return s(x, 4)
    vLane = V.alloc(); vL16 = V.alloc(); vTag = V.alloc(); vI = V.alloc(); vGp = V.alloc()
    vt0 = V.alloc(); vt1 = V.alloc(); vt2 = V.alloc(); vt3 = V.alloc()
    vWDa = V.alloc(2); vRr = V.alloc(); vHi32 = V.alloc(); vRow = V.alloc()

    def poll(load_fn, check_fn):
        lp = a.lab('Lpoll'); ld = a.lab('Lpdone')
        a(f'{lp}:')
        load_fn()
        a(f's_sub_u32 {s(sB)}, {s(sB)}, 1\ns_cmp_lt_i32 {s(sB)}, 0\ns_cbranch_scc1 {ld}')
        check_fn()
        a(f's_cbranch_vccnz {lp}\n{ld}:')
    def tagcheck(regs, tmp, mask=False):
        a(f'v_xor_b32 {v(tmp)}, {v(vTag)}, {v(regs[0])}')
        for r in regs[1:]:
            a(f'v_bitop3_b32 {v(tmp)}, {v(tmp)}, {v(r)}, {v(vTag)} bitop3:0xf6')
        if mask: a(f'v_cmp_lt_u32 vcc, 15, {v(tmp)}')
        else: a(f'v_cmp_ne_u32 vcc, 0, {v(tmp)}')
    def unpack(dst, src):
        a(f'v_lshlrev_b32 {v(dst)}, 16, {v(src)}')
        a(f'v_and_b32 {v(dst + 1)}, 0xffff0000, {v(src)}')
    def signal(vaddr_sgpr_off, local):
        a('s_waitcnt vmcnt(0)')
        if local:
            ln = a.lab('Lsig_nl'); le = a.lab('Lsig_e')
            a(f's_cmp_eq_u32 {s(sLOC)}, 0\ns_mov_b64 exec, 1\ns_cbranch_scc1 {ln}')
            a(f'buffer_store_dword {v(vTag)}, off, {SR(sWS)}, {s(vaddr_sgpr_off)}')
            a(f'{le}:\ns_mov_b64 exec, -1')
            cold.append((ln, le, f'buffer_wbl2 sc1\ns_waitcnt vmcnt(0)\nbuffer_store_dword {v(vTag)}, off, {SR(sWS)}, {s(vaddr_sgpr_off)} sc1'))
    def acquire():
        ln = a.lab('Lacq_nl'); le = a.lab('Lacq_e')
        a(f's_cmp_eq_u32 {s(sLOC)}, 0\ns_cbranch_scc1 {ln}\n{le}:')
        cold.append((ln, le, 'buffer_inv sc1\ns_waitcnt vmcnt(0)'))
    cold = []

    a(f's_cmp_ge_u32 s2, 256\ns_cbranch_scc1 Lend')
    stamp('start')
    a(f'''s_load_dwordx2 {s(sWS,2)}, s[0:1], 104
    s_load_dwordx2 {s(sCC,2)}, s[0:1], 72
    s_load_dwordx2 {s(sWM,2)}, s[0:1], 80
    s_load_dwordx2 {s(sX,2)}, s[0:1], 0
    s_load_dwordx4 {s(pWK,4)}, s[0:1], 16
    s_load_dwordx2 {s(sWQ,2)}, s[0:1], 8
    s_load_dwordx2 {s(pWO,2)}, s[0:1], 32
    s_load_dwordx4 {s(pWG,4)}, s[0:1], 48
    s_load_dwordx2 {s(pWD,2)}, s[0:1], 64
    s_load_dwordx2 {s(sOUT,2)}, s[0:1], 88''')
    a(f'v_lshrrev_b32 {v(vt0)}, 6, v0')
    a(f'v_and_b32 {v(vLane)}, 63, v0')
    a(f'v_readfirstlane_b32 {s(sW)}, {v(vt0)}')
    for srd, n in ((sX, 1835008), (sWQ, 401408), (sKV, 25088), (sWM, 448 * 5376), (sWS, WS_SIZE), (sOUT, 1835008), (sCC, 896)):
        a(f's_mov_b32 {s(srd+2)}, {n}\ns_mov_b32 {s(srd+3)}, 0x20000')
    a(f's_mov_b32 {s(sSH+3)}, 0x20000')
    a(f'''s_getreg_b32 {s(sXCC)}, hwreg(HW_REG_XCC_ID, 0, 4)
    s_and_b32 {s(t0)}, s2, 7
    s_lshr_b32 {s(t1)}, s2, 3
    s_lshl_b32 {s(sL)}, {s(t0)}, 5
    s_add_u32 {s(sL)}, {s(sL)}, {s(t1)}
    s_lshr_b32 {s(sT)}, {s(sL)}, 2
    s_and_b32 {s(sHQ)}, {s(sL)}, 3
    s_lshr_b32 {s(sG)}, {s(sL)}, 4
    s_and_b32 {s(sM)}, {s(sL)}, 15
    s_mov_b32 {s(sB)}, 0x20000
    s_mov_b32 {s(sM56)}, -1
    s_mov_b32 {s(sM56+1)}, 0x00ffffff''')
    sU = S.alloc(); sUok = S.alloc()
    a(f'''s_lshr_b32 {s(t2)}, {s(t1)}, 2
    s_lshl_b32 {s(t2)}, {s(t2)}, 3
    s_add_u32 {s(t2)}, {s(t2)}, {s(t0)}
    s_and_b32 {s(t3)}, {s(t1)}, 3
    s_lshl_b32 {s(sU)}, {s(t2)}, 2
    s_add_u32 {s(sU)}, {s(sU)}, {s(t3)}
    s_cmp_lt_u32 {s(t2)}, 42
    s_cselect_b32 {s(sUok)}, 1, 0
    s_cmp_eq_u32 {s(sW)}, 3
    s_cselect_b32 {s(sUok)}, {s(sUok)}, 0''')
    a(f'''v_lshlrev_b32 {v(vL16)}, 4, {v(vLane)}
    v_and_b32 {v(vI)}, 15, {v(vLane)}
    v_lshrrev_b32 {v(vGp)}, 4, {v(vLane)}''')
    vX56 = V.alloc()
    a(f'''v_mov_b32 {v(vt0)}, {OOB}
    v_cmp_gt_u32 vcc, 56, {v(vLane)}
    v_cndmask_b32 {v(vX56)}, {v(vt0)}, {v(vL16)}, vcc''')
    vWM = V.alloc()
    a(f'''v_lshrrev_b32 {v(vt0)}, 1, {v(vLane)}
    v_mul_u32_u24 {v(vt0)}, 5376, {v(vt0)}
    v_and_b32 {v(vt1)}, 1, {v(vLane)}
    v_lshl_add_u32 {v(vWM)}, {v(vt1)}, 4, {v(vt0)}''')
    sSrc = S.alloc(); sStr8 = S.alloc(); sDst = S.alloc(); sDP = S.alloc(); sDK = S.alloc(); sSHn = S.alloc()
    vSHs = V.alloc(); vSHs3 = V.alloc(); vSHd = V.alloc(); vSHr = V.alloc()
    a(f'''s_mul_i32 {s(t0)}, {s(sL)}, 2341
    s_lshr_b32 {s(t0)}, {s(t0)}, 16
    s_mul_i32 {s(t1)}, {s(t0)}, 28
    s_sub_u32 {s(t1)}, {s(sL)}, {s(t1)}
    s_mul_i32 {s(t2)}, {s(sL)}, 9363
    s_lshr_b32 {s(t2)}, {s(t2)}, 16
    s_mul_i32 {s(t3)}, {s(t2)}, 7
    s_sub_u32 {s(t3)}, {s(sL)}, {s(t3)}
    s_cmp_lt_u32 {s(sW)}, 2
    s_cselect_b32 {s(t0)}, {s(t0)}, {s(t2)}
    s_cselect_b32 {s(t1)}, {s(t1)}, {s(t3)}''')
    a(f'''s_mov_b32 {s(t2)}, 896
    s_mov_b32 {s(t3)}, {64*896}
    s_mov_b32 {s(sDP)}, 1024
    s_mov_b32 {s(sDK)}, 2048
    s_mov_b32 {s(t4)}, 256
    s_mov_b32 {s(sDst)}, {112*2048}
    s_cmov_b32 {s(t2)}, 3584
    s_cmov_b32 {s(t3)}, {64*3584}
    s_cmov_b32 {s(sDP)}, {2*28672}
    s_cmov_b32 {s(sDK)}, 1024
    s_cmov_b32 {s(t4)}, 28672
    s_cmov_b32 {s(sDst)}, {4*28672}
    s_mov_b32 {s(t5)}, 512
    s_mov_b32 {s(sSH+2)}, {448*3584}
    s_mov_b32 {s(sSHn)}, 196
    s_cmp_eq_u32 {s(sW)}, 3
    s_cselect_b32 {s(t3)}, {28*896}, {s(t3)}
    s_cselect_b32 {s(sDP)}, 32768, {s(sDP)}
    s_cselect_b32 {s(sDK)}, 512, {s(sDK)}
    s_cselect_b32 {s(t4)}, 16384, {s(t4)}
    s_cselect_b32 {s(sDst)}, 65536, {s(sDst)}
    s_cselect_b32 {s(t5)}, 256, {s(t5)}
    s_cselect_b32 {s(sSH+2)}, 401408, {s(sSH+2)}
    s_cselect_b32 {s(sSHn)}, 112, {s(sSHn)}''')
    a(f'''v_lshrrev_b32 {v(vt0)}, 3, {v(vLane)}
    v_mul_lo_u32 {v(vt1)}, {v(vt0)}, {s(t2)}
    v_and_b32 {v(vt2)}, 7, {v(vLane)}
    v_lshl_add_u32 {v(vSHs)}, {v(vt2)}, 4, {v(vt1)}
    v_mov_b32 {v(vSHs3)}, {v(vSHs)}
    v_and_b32 {v(vt0)}, 1, {v(vGp)}
    v_mul_lo_u32 {v(vt1)}, {v(vt0)}, {s(t4)}
    v_lshrrev_b32 {v(vt2)}, 1, {v(vGp)}
    v_mul_lo_u32 {v(vt3)}, {v(vt2)}, {s(t5)}
    v_add_u32 {v(vt1)}, {v(vt1)}, {v(vt3)}
    v_lshl_add_u32 {v(vSHd)}, {v(vI)}, 4, {v(vt1)}''')
    lw = a.lab('Lw3')
    a(f'''s_cbranch_scc0 {lw}
    s_mov_b32 exec_lo, 0
    v_mov_b32 {v(vSHs3)}, {OOB}
    s_mov_b64 exec, -1
    {lw}:''')
    vSwp8 = V.alloc()
    a(f'''v_and_b32 {v(vt1)}, 1, {v(vI)}
    v_lshlrev_b32 {v(vt1)}, 4, {v(vt1)}
    v_and_b32 {v(vt3)}, 2, {v(vI)}
    v_lshl_add_u32 {v(vSwp8)}, {v(vt3)}, 2, {v(vt1)}''')
    a(f'''v_lshrrev_b32 {v(vt1)}, 2, {v(vI)}
    v_lshl_add_u32 {v(vt1)}, {v(vt2)}, 3, {v(vt1)}
    v_lshlrev_b32 {v(vt1)}, 7, {v(vt1)}
    v_lshl_add_u32 {v(vt1)}, {v(vt0)}, 5, {v(vt1)}
    v_add_u32 {v(vt1)}, {v(vt1)}, {v(vSwp8)}
    s_lshl_b32 {s(t4)}, {s(sW)}, 13
    v_add_u32 {v(vSHr)}, {s(t4)}, {v(vt1)}''')
    a(f'''s_mul_i32 {s(sSrc)}, {s(t0)}, {s(t3)}
    s_lshl_b32 {s(t4)}, {s(t1)}, 7
    s_add_u32 {s(sSrc)}, {s(sSrc)}, {s(t4)}
    s_lshl_b32 {s(sStr8)}, {s(t2)}, 3
    s_mul_i32 {s(sDst)}, {s(sDst)}, {s(t1)}
    s_mul_i32 {s(t4)}, {s(t0)}, {s(sDK)}
    s_cmp_eq_u32 {s(sW)}, 3
    s_cselect_b32 {s(t5)}, 1, 2
    s_lshl_b32 {s(t4)}, {s(t4)}, {s(t5)}
    s_add_u32 {s(sDst)}, {s(sDst)}, {s(t4)}
    s_mov_b32 {s(t4)}, {WS_W1}
    s_cmp_eq_u32 {s(sW)}, 1
    s_cselect_b32 {s(t4)}, {WS_W1 + 256}, {s(t4)}
    s_cmp_eq_u32 {s(sW)}, 2
    s_cselect_b32 {s(t4)}, {WS_WD}, {s(t4)}
    s_cmp_eq_u32 {s(sW)}, 3
    s_cselect_b32 {s(t4)}, {WS_WO}, {s(t4)}
    s_add_u32 {s(sDst)}, {s(sDst)}, {s(t4)}''')
    sXR = S.alloc(8)
    for i in range(8):
        a(f'''s_lshl_b32 {s(t0)}, {s(sHQ)}, 3
        s_lshl_b32 {s(t1)}, {s(sW)}, 1
        s_add_u32 {s(t0)}, {s(t0)}, {s(t1)}
        s_add_u32 {s(t0)}, {s(t0)}, {8*(i>>1) + (i&1)}
        s_and_b32 {s(sXR+i)}, {s(t0)}, 31''') if i == 0 else a(f'''s_add_u32 {s(t1)}, {s(t0)}, {8*(i>>1) + (i&1)}
        s_and_b32 {s(sXR+i)}, {s(t1)}, 31''')
    a(f's_lshl_b32 {s(t5)}, {s(sT)}, 5')
    a('s_waitcnt lgkmcnt(0)')
    a(f's_load_dword {s(sTAG)}, {s(sWS,2)}, {WS_EPOCH}')
    stamp('karg')
    vC = V.alloc(4, 2)
    l1 = a.lab('Lnomod')
    a(f's_cmp_eq_u32 {s(sUok)}, 0\ns_cbranch_scc1 {l1}')
    a(f'buffer_load_dwordx4 {v(vC,4)}, {v(vL16)}, {SR(sCC)}, 0 offen')
    a(f's_lshl_b32 {s(t0)}, {s(sU)}, 5')
    for j in range(14):
        a(f's_mov_b32 m0, {L_WM + j*1024}')
        if j: a(f's_add_u32 {s(t0)}, {s(t0)}, {32*5376}')
        a(f'buffer_load_dwordx4 {v(vWM)}, {SR(sWM)}, {s(t0)} offen lds', w=[f'wm{j}'])
    a(f'{l1}:')
    vXR = V.alloc(32, 2)
    for i in range(8):
        a(f's_add_u32 {s(t0)}, {s(t5)}, {s(sXR+i)}\ns_mul_i32 {s(t0)}, {s(t0)}, 896')
        a(f'buffer_load_dwordx4 {v(vXR+4*i,4)}, {v(vX56)}, {SR(sX)}, {s(t0)} offen')
    a(f'''s_cmp_lt_u32 {s(sW)}, 2
    s_cselect_b32 {s(sKV)}, {s(pWK)}, {s(pWK+2)}
    s_cselect_b32 {s(sKV+1)}, {s(pWK+1)}, {s(pWK+3)}
    s_and_b32 {s(t0)}, {s(sW)}, 1
    s_mul_i32 {s(t0)}, {s(t0)}, {13*1024}
    s_mul_i32 {s(t1)}, {s(sW)}, {13*1024}
    s_add_u32 {s(t1)}, {s(t1)}, {L_KVW}''')
    for j in range(13):
        if j % 4 == 0:
            if j: a(f's_add_u32 {s(t0)}, {s(t0)}, 4096\ns_add_u32 {s(t1)}, {s(t1)}, 4096')
            a(f's_mov_b32 m0, {s(t1)}')
        a(f'buffer_load_dwordx4 {v(vL16)}, {SR(sKV)}, {s(t0)} offen offset:{(j%4)*1024} lds', w=['kvw'])
    a(f'''s_cmp_eq_u32 {s(sW)}, 0
    s_cselect_b32 {s(sSH)}, {s(pWG)}, {s(pWG+2)}
    s_cselect_b32 {s(sSH+1)}, {s(pWG+1)}, {s(pWG+3)}
    s_cmp_eq_u32 {s(sW)}, 2
    s_cselect_b32 {s(sSH)}, {s(pWD)}, {s(sSH)}
    s_cselect_b32 {s(sSH+1)}, {s(pWD+1)}, {s(sSH+1)}
    s_cmp_eq_u32 {s(sW)}, 3
    s_cselect_b32 {s(sSH)}, {s(pWO)}, {s(sSH)}
    s_cselect_b32 {s(sSH+1)}, {s(pWO+1)}, {s(sSH+1)}''')
    l2 = a.lab('Lnosh')
    a(f's_cmp_ge_u32 {s(sL)}, {s(sSHn)}\ns_cbranch_scc1 {l2}')
    a(f's_lshl_b32 {s(t1)}, {s(sW)}, 13')
    for j in range(8):
        if j == 4: a(f's_cmp_eq_u32 {s(sW)}, 3\ns_cbranch_scc1 {l2}')
        a(f's_add_u32 m0, {s(t1)}, {L_SHUF + j*1024}')
        if j: a(f's_add_u32 {s(sSrc)}, {s(sSrc)}, {s(sStr8)}')
        a(f'buffer_load_dwordx4 {v(vSHs3 if j == 3 else vSHs)}, {SR(sSH)}, {s(sSrc)} offen lds', w=['shuf'])
    a(f'{l2}:')
    a(f's_and_b32 {s(sTAG)}, {s(sTAG)}, 0xfffffff0\ns_add_u32 {s(sTAG)}, {s(sTAG)}, 0x9e3779b0\nv_mov_b32 {v(vTag)}, {s(sTAG)}')

    l3 = a.lab('Lnomod2')
    a(f's_cmp_eq_u32 {s(sUok)}, 0\ns_cbranch_scc1 {l3}')
    vCf = V.alloc(8, 2); vCe = V.alloc(8, 2)
    for j in range(4): unpack(vCf + 2*j, vC + j)
    for j in range(8): a(f'v_mul_f32 {v(vCe+j)}, {f32(-1.4426950408889634)}, {v(vCf+j)}')
    for j in range(8): a(f'v_exp_f32 {v(vCe+j)}, {v(vCe+j)}')
    for j in range(8): a(f'v_add_f32 {v(vCe+j)}, 1.0, {v(vCe+j)}')
    for j in range(8): a(f'v_rcp_f32 {v(vCe+j)}, {v(vCe+j)}')
    for j in range(8): a(f'v_mul_f32 {v(vCf+j)}, {v(vCf+j)}, {v(vCe+j)}')
    for j in range(4): a(f'v_cvt_pk_bf16_f32 {v(vC+j)}, {v(vCf+2*j)}, {v(vCf+2*j+1)}')
    a(f'ds_write_b128 {v(vL16)}, {v(vC,4)} offset:{L_SILU}')
    vMB = V.alloc(56, 2); vMA = V.alloc(16, 2); vMD = V.alloc(4, 2)
    a(f'''v_lshlrev_b32 {v(vt0)}, 4, {v(vGp)}
    v_lshlrev_b32 {v(vt1)}, 3, {v(vI)}
    v_lshl_add_u32 {v(vt1)}, {v(vGp)}, 8, {v(vt1)}''')
    for j in range(14): a(f'ds_read_b128 {v(vMB+4*j,4)}, {v(vt0)} offset:{L_SILU + 64*j}')
    def modrd(j):
        a(f'ds_read_b64_tr_b16 {v(vMA+4*(j%4),2)}, {v(vt1)} offset:{L_WM + 1024*j}', r=[f'wm{j}'])
        a(f'ds_read_b64_tr_b16 {v(vMA+4*(j%4)+2,2)}, {v(vt1)} offset:{L_WM + 1024*j + 128}')
    for j in range(3): modrd(j)
    for j in range(14):
        if j + 3 < 14: modrd(j + 3)
        a(f'v_mfma_f32_16x16x32_bf16 {v(vMD,4)}, {v(vMA+4*(j%4),4)}, {v(vMB+4*j,4)}, {v(vMD,4) if j else 0}')
    a(f'''s_lshl_b32 {s(t0)}, {s(sU)}, 6
    s_add_u32 {s(t0)}, {s(t0)}, {WS_MODG}
    v_mov_b32 {v(vC+1)}, {v(vTag)}
    v_mov_b32 {v(vC+3)}, {v(vTag)}
    v_cvt_pk_bf16_f32 {v(vC)}, {v(vMD)}, {v(vMD+1)}
    v_cvt_pk_bf16_f32 {v(vC+2)}, {v(vMD+2)}, {v(vMD+3)}
    s_mov_b32 exec_lo, 0x00010001
    s_mov_b32 exec_hi, 0x00010001
    buffer_store_dwordx4 {v(vC,4)}, {v(vLane)}, {SR(sWS)}, {s(t0)} offen sc1
    s_mov_b64 exec, -1''')
    a(f'{l3}:')
    V.rel(vCf, 8); V.rel(vCe, 8); V.rel(vMB, 56); V.rel(vMA, 16); V.rel(vMD, 4); V.rel(vWM)
    stamp('modpub')

    vS1 = V.alloc(8); vS2 = V.alloc(8); vXH = V.alloc(64, 2); vOne = V.alloc()
    a(f'v_mov_b32 {v(vOne)}, 0x3f803f80')
    for q in range(4):
        for i in range(8):
            a(f'v_dot2_f32_bf16 {v(vS1+i)}, {v(vXR+4*i+q)}, {v(vOne)}, {v(vS1+i) if q else 0}')
            a(f'v_dot2_f32_bf16 {v(vS2+i)}, {v(vXR+4*i+q)}, {v(vXR+4*i+q)}, {v(vS2+i) if q else 0}')
    for b in (vS1, vS2):
        for i in range(0, 8, 2): a(f'v_permlane32_swap_b32 {v(b+i)}, {v(b+i+1)}')
    for b in (vS1, vS2):
        for i in range(0, 8, 2): a(f'v_add_f32 {v(b+i)}, {v(b+i)}, {v(b+i+1)}')
    for b in (vS1, vS2):
        for i in (0, 4): a(f'v_permlane16_swap_b32 {v(b+i)}, {v(b+i+2)}')
    for b in (vS1, vS2):
        for i in (0, 4): a(f'v_add_f32 {v(b+i)}, {v(b+i)}, {v(b+i+2)}')
    for b in (vS1, vS2):
        a(f'v_add_f32_dpp {v(b+1)}, {v(b)}, {v(b)} row_ror:8 row_mask:0xf bank_mask:0x3')
    for b in (vS1, vS2):
        a(f'v_add_f32_dpp {v(b+1)}, {v(b+4)}, {v(b+4)} row_ror:8 row_mask:0xf bank_mask:0xc')
    for m_ in ('row_half_mirror', 'quad_perm:[1,0,3,2]', 'quad_perm:[2,3,0,1]'):
        for b in (vS1, vS2):
            a(f'v_add_f32_dpp {v(b+1)}, {v(b+1)}, {v(b+1)} {m_} row_mask:0xf bank_mask:0xf')
    a(f'''v_mul_f32 {v(vS1)}, {f32(1/448)}, {v(vS1+1)}
    v_mul_f32 {v(vS2)}, {f32(1/448)}, {v(vS2+1)}
    v_fma_f32 {v(vS2)}, -{v(vS1)}, {v(vS1)}, {v(vS2)}
    v_max_f32 {v(vS2)}, 0, {v(vS2)}
    v_add_f32 {v(vS2)}, {f32(1e-5)}, {v(vS2)}
    v_rsq_f32 {v(vS2)}, {v(vS2)}
    v_mul_f32 {v(vS1)}, -1.0, {v(vS1)}
    v_mul_f32 {v(vS1)}, {v(vS1)}, {v(vS2)}''')
    sST = S.alloc(16, 2)
    for i in range(8):
        ln = (i & 1) * 32 + ((i >> 1) & 1) * 16 + (i >> 2) * 8
        a(f'v_readlane_b32 {s(sST+2*i)}, {v(vS2)}, {ln}\nv_readlane_b32 {s(sST+2*i+1)}, {v(vS1)}, {ln}')
    for i in range(8):
        for q in range(4): unpack(vXH + 8*i + 2*q, vXR + 4*i + q)
        for q in range(4):
            r = v(vXH + 8*i + 2*q, 2)
            a(f'v_pk_fma_f32 {r}, {r}, {s(sST+2*i,2)}, {s(sST+2*i,2)} op_sel:[0,0,1] op_sel_hi:[1,0,1]')
    S.rel(sST, 16); V.rel(vS1, 8); V.rel(vS2, 8); V.rel(vOne); V.rel(vX56)
    stamp('ln1')

    l4 = a.lab('Lnosh2')
    a(f's_cmp_ge_u32 {s(sL)}, {s(sSHn)}\ns_cbranch_scc1 {l4}')
    a.need('shuf')
    for half in range(2):
        if half: a(f's_cmp_eq_u32 {s(sW)}, 3\ns_cbranch_scc1 {l4}')
        for ks in (2*half, 2*half + 1):
            for p in range(2):
                d = vXR + 4 * (2*ks + p)
                a(f'ds_read_b64_tr_b16 {v(d,2)}, {v(vSHr)} offset:{L_SHUF + ks*2048 + p*64}')
                a(f'ds_read_b64_tr_b16 {v(d+2,2)}, {v(vSHr)} offset:{L_SHUF + ks*2048 + p*64 + 512}')
        for ks in (2*half, 2*half + 1):
            a(f's_add_u32 {s(t0)}, {s(sDst)}, {s(sDP)}')
            a(f'buffer_store_dwordx4 {v(vXR+8*ks,4)}, {v(vSHd)}, {SR(sWS)}, {s(sDst)} offen sc1')
            a(f'buffer_store_dwordx4 {v(vXR+8*ks+4,4)}, {v(vSHd)}, {SR(sWS)}, {s(t0)} offen sc1')
            a(f's_add_u32 {s(sDst)}, {s(sDst)}, {s(sDK)}')
    a(f'{l4}:')
    for x in (vSHs, vSHs3, vSHd, vSHr): V.rel(x)
    for x in (sSrc, sStr8, sDst, sDP, sDK, sSHn, sU, sUok): S.rel(x)
    stamp('shufst')
    a.need('kvw')
    a('s_waitcnt lgkmcnt(0)\ns_barrier')

    stamp('bar1')
    vWQ = V.alloc()
    a(f'''v_mul_u32_u24 {v(vt0)}, 4682, {v(vLane)}
    v_lshrrev_b32 {v(vt0)}, 16, {v(vt0)}
    v_mul_u32_u24 {v(vt1)}, 14, {v(vt0)}
    v_sub_u32 {v(vt1)}, {v(vLane)}, {v(vt1)}
    v_and_b32 {v(vt2)}, 1, {v(vt0)}
    v_lshrrev_b32 {v(vt0)}, 1, {v(vt0)}
    v_lshl_add_u32 {v(vt0)}, {v(vt2)}, 2, {v(vt0)}
    v_mul_u32_u24 {v(vt0)}, 896, {v(vt0)}
    v_lshl_add_u32 {v(vWQ)}, {v(vt1)}, 4, {v(vt0)}
    s_mul_i32 {s(t0)}, {s(sW)}, {112*896}
    s_mul_i32 {s(t1)}, {s(sHQ)}, 224
    s_add_u32 {s(t0)}, {s(t0)}, {s(t1)}
    s_mul_i32 {s(t1)}, {s(sW)}, {28*896}
    s_mov_b64 exec, {s(sM56,2)}''')
    for j in range(28):
        a(f's_add_u32 m0, {s(t1)}, {L_WQ + j*896}')
        if j: a(f's_add_u32 {s(t0)}, {s(t0)}, {(2 if j & 1 else 6)*896}')
        a(f'buffer_load_dwordx4 {v(vWQ)}, {SR(sWQ)}, {s(t0)} offen lds', w=['wq'])
    a('s_mov_b64 exec, -1')
    V.rel(vWQ)
    stamp('wqiss')
    a(f'''v_and_b32 {v(vt0)}, 3, {v(vI)}
    v_lshlrev_b32 {v(vt0)}, 3, {v(vt0)}
    s_cmp_lt_u32 {s(sW)}, 2
    s_cselect_b64 vcc, -1, 0
    v_cndmask_b32 {v(vt0)}, {v(vSwp8)}, {v(vt0)}, vcc
    v_lshrrev_b32 {v(vt1)}, 2, {v(vI)}
    v_lshl_add_u32 {v(vt1)}, {v(vGp)}, 3, {v(vt1)}
    v_mul_u32_u24 {v(vt1)}, 56, {v(vt1)}
    s_lshr_b32 {s(t0)}, {s(sW)}, 1
    s_mul_i32 {s(t0)}, {s(t0)}, {26*1024}
    s_and_b32 {s(t1)}, {s(sW)}, 1
    s_lshl_b32 {s(t1)}, {s(t1)}, 5
    s_add_u32 {s(t0)}, {s(t0)}, {s(t1)}
    s_add_u32 {s(t0)}, {s(t0)}, {L_KVW}
    v_add3_u32 {v(vt0)}, {v(vt0)}, {v(vt1)}, {s(t0)}''')
    for j in range(14):
        a(f'ds_read_b64_tr_b16 {ac(4*j,2)}, {v(vt0)} offset:{1792*j}')
        a(f'ds_read_b64_tr_b16 {ac(4*j+2,2)}, {v(vt0)} offset:{1792*j + 224}')
    vHB = V.alloc(); vKVst = V.alloc(); vKown = V.alloc(); vPad = V.alloc(2, 2); vMod = V.alloc()
    sPadM = S.alloc(2, 2)
    a(f'''v_and_b32 {v(vt0)}, 7, {v(vI)}
    s_lshl_b32 {s(t0)}, {s(sHQ)}, 3
    v_add_u32 {v(vt1)}, {s(t0)}, {v(vt0)}
    v_mul_u32_u24 {v(vt1)}, 912, {v(vt1)}
    v_lshl_add_u32 {v(vt1)}, {v(vGp)}, 4, {v(vt1)}
    v_add_u32 {v(vHB)}, {L_H1}, {v(vt1)}
    v_lshlrev_b32 {v(vMod)}, 5, {v(vLane)}
    s_and_b32 {s(t2)}, {s(sW)}, 1
    s_lshr_b32 {s(t3)}, {s(sHQ)}, 1
    s_and_b32 {s(t4)}, {s(sHQ)}, 1''')
    lv = a.lab('Lvaddr'); le = a.lab('Laddr_e')
    a(f'''s_cmp_ge_u32 {s(sW)}, 2
    s_cbranch_scc1 {lv}''')
    a(f'''v_lshrrev_b32 {v(vt1)}, 1, {v(vGp)}
    v_and_b32 {v(vt2)}, 1, {v(vGp)}
    v_lshlrev_b32 {v(vt2)}, 3, {v(vt2)}
    v_lshl_add_u32 {v(vKown)}, {v(vt1)}, 7, {v(vt2)}
    v_lshl_add_u32 {v(vKown)}, {v(vt0)}, 4, {v(vKown)}
    s_lshl_b32 {s(t0)}, {s(t2)}, 8
    s_add_u32 {s(t0)}, {s(t0)}, {L_KOWN}
    v_add_u32 {v(vKown)}, {s(t0)}, {v(vKown)}
    v_lshl_add_u32 {v(vKVst)}, {v(vt1)}, 9, {v(vt2)}
    v_and_b32 {v(vt1)}, 3, {v(vI)}
    v_lshl_add_u32 {v(vKVst)}, {v(vt1)}, 4, {v(vKVst)}
    v_and_b32 {v(vt1)}, 4, {v(vI)}
    v_lshl_add_u32 {v(vKVst)}, {v(vt1)}, 5, {v(vKVst)}
    s_lshl_b32 {s(t0)}, {s(t2)}, 10
    s_lshl_b32 {s(t1)}, {s(t3)}, 8
    s_add_u32 {s(t0)}, {s(t0)}, {s(t1)}
    s_lshl_b32 {s(t1)}, {s(t4)}, 6
    s_add_u32 {s(t0)}, {s(t0)}, {s(t1)}
    v_add_u32 {v(vKVst)}, {s(t0)}, {v(vKVst)}
    v_mov_b32 {v(vPad)}, 0x3f803f80
    v_mov_b32 {v(vPad+1)}, 0x00003f80
    s_mov_b32 {s(sPadM)}, 0
    s_mov_b32 {s(sPadM+1)}, 0xffff0000
    s_mov_b32 exec_lo, 0xff00ff00
    s_mov_b32 exec_hi, 0xff00ff00
    v_mov_b32 {v(vKVst)}, {OOB}
    s_mov_b64 exec, -1
    s_branch {le}
    {lv}:''')
    a(f'''v_lshlrev_b32 {v(vKVst)}, 3, {v(vGp)}
    v_lshl_add_u32 {v(vKVst)}, {v(vI)}, 4, {v(vKVst)}
    s_lshl_b32 {s(t0)}, {s(sHQ)}, 9
    s_lshl_b32 {s(t1)}, {s(t2)}, 8
    s_add_u32 {s(t0)}, {s(t0)}, {s(t1)}
    s_add_u32 {s(t0)}, {s(t0)}, 2048
    v_add_u32 {v(vKVst)}, {s(t0)}, {v(vKVst)}
    v_mov_b32 {v(vKown)}, {L_KOWN + 512}
    v_mov_b32 {v(vPad)}, 0
    v_mov_b32 {v(vPad+1)}, 0
    s_mov_b32 exec_lo, 0x10001000
    s_mov_b32 exec_hi, 0x10001000
    v_mov_b32 {v(vPad)}, 0x3f803f80
    v_mov_b32 {v(vPad+1)}, 0x3f803f80
    s_mov_b32 {s(sPadM)}, 0xf000f000
    s_mov_b32 {s(sPadM+1)}, 0xf000f000
    s_mov_b32 exec_lo, 0
    s_mov_b32 exec_hi, -1
    v_mov_b32 {v(vKVst)}, {OOB}
    s_mov_b64 exec, -1
    {le}:''')
    a(f'''s_cmp_eq_u32 {s(t2)}, 0
    s_cselect_b64 {s(sPadM,2)}, 0, {s(sPadM,2)}''')
    for i in range(8): a(f's_mul_i32 {s(sXR+i)}, {s(sXR+i)}, 912')
    vHW = V.alloc(8)
    for i in range(8): a(f'v_add_u32 {v(vHW+i)}, {s(sXR+i)}, {v(vL16)}')
    for i in range(8): a(f'v_add_u32 {v(vHW+i)}, {L_H1}, {v(vHW+i)}')
    S.rel(sXR, 8)
    sKVo = S.alloc(); sFl = S.alloc()
    a(f'''s_lshl_b32 {s(sKVo)}, {s(sT)}, 12
    s_add_u32 {s(sKVo)}, {s(sKVo)}, {WS_KV}
    s_lshl_b32 {s(sFl)}, {s(sL)}, 2
    s_add_u32 {s(sFl)}, {s(sFl)}, {s(sW)}
    s_lshl_b32 {s(sFl)}, {s(sFl)}, 2''')
    a('s_waitcnt lgkmcnt(0)\ns_barrier')
    stamp('prepoll')

    vG = V.alloc(16, 2); vSA = V.alloc(8, 2); vCA = V.alloc(8, 2)
    a(f's_mov_b64 exec, {s(sM56,2)}\ns_mov_b32 {s(t0)}, {WS_MODG}')
    def ld():
        for j, off in enumerate((0, 16, 1792, 1808)):
            a(f'buffer_load_dwordx4 {v(vG+4*j,4)}, {v(vMod)}, {SR(sWS)}, {s(t0)} offen offset:{off} sc1')
    poll(ld, lambda: tagcheck([vG + 2*j + 1 for j in range(8)], vt0))
    stamp('modrcv')
    for j in range(4): unpack(vCA + 2*j, vG + 8 + 2*j)
    for j in range(4): a(f'v_pk_add_f32 {v(vCA+2*j,2)}, {v(vCA+2*j,2)}, 1.0 op_sel_hi:[1,0]')
    for j in range(4): unpack(vSA + 2*j, vG + 2*j)
    def modrow(i):
        for q in range(4):
            r = v(vXH + 8*i + 2*q, 2)
            a(f'v_pk_fma_f32 {r}, {r}, {v(vCA+2*q,2)}, {v(vSA+2*q,2)}')
        for q in range(4): a(f'v_cvt_pk_bf16_f32 {v(vXR+4*i+q)}, {v(vXH+8*i+2*q)}, {v(vXH+8*i+2*q+1)}')
        a(f'ds_write_b128 {v(vHW+i)}, {v(vXR+4*i,4)}')
    modrow(0); modrow(1)
    a('s_mov_b64 exec, -1\ns_waitcnt lgkmcnt(0)\ns_barrier')
    vHF = V.alloc(56, 2); vD = V.alloc(4, 2)
    for j in range(14): a(f'ds_read_b128 {v(vHF+4*j,4)}, {v(vHB)} offset:{64*j}')
    lv = a.lab('Lvmm'); le = a.lab('Lmm_e')
    a(f's_cmp_ge_u32 {s(sW)}, 2\ns_cbranch_scc1 {lv}')
    for j in range(14): a(f'v_mfma_f32_16x16x32_bf16 {v(vD,4)}, {ac(4*j,4)}, {v(vHF+4*j,4)}, {v(vD,4) if j else 0}')
    a(f's_branch {le}\n{lv}:')
    for j in range(14): a(f'v_mfma_f32_16x16x32_bf16 {v(vD,4)}, {v(vHF+4*j,4)}, {ac(4*j,4)}, {v(vD,4) if j else 0}')
    a(f'{le}:')
    a(f'''v_cvt_pk_bf16_f32 {v(vG)}, {v(vD)}, {v(vD+1)}
    v_cvt_pk_bf16_f32 {v(vG+1)}, {v(vD+2)}, {v(vD+3)}
    v_cndmask_b32 {v(vG)}, {v(vG)}, {v(vPad)}, {s(sPadM,2)}
    v_cndmask_b32 {v(vG+1)}, {v(vG+1)}, {v(vPad+1)}, {s(sPadM,2)}
    buffer_store_dwordx2 {v(vG,2)}, {v(vKVst)}, {SR(sWS)}, {s(sKVo)} offen sc1
    ds_write_b64 {v(vKown)}, {v(vG,2)}''')
    stamp('kvst')
    a(f's_mov_b64 exec, {s(sM56,2)}')
    for i in range(2, 8): modrow(i)
    a('s_mov_b64 exec, -1')
    V.rel(vHF, 56); V.rel(vD, 4); V.rel(vHB); V.rel(vKVst); V.rel(vKown); V.rel(vPad, 2); V.rel(vMod); V.rel(vHW, 8)
    V.rel(vG, 16); V.rel(vSA, 8); V.rel(vCA, 8); V.rel(vXH, 64); V.rel(vXR, 32); V.rel(vC, 4); S.rel(sPadM, 2)
    a(f'''s_or_b32 {s(t1)}, {s(sTAG)}, {s(sXCC)}
    v_mov_b32 {v(vt3)}, {s(t1)}
    s_add_u32 {s(t0)}, {s(sFl)}, {WS_FKV}
    s_waitcnt vmcnt(0)
    s_mov_b64 exec, 1
    buffer_store_dword {v(vt3)}, off, {SR(sWS)}, {s(t0)} sc1
    s_mov_b64 exec, -1''')
    vQA = V.alloc(2); vQB = V.alloc()
    a(f'''v_lshrrev_b32 {v(vt0)}, 2, {v(vI)}
    v_lshrrev_b32 {v(vt1)}, 1, {v(vGp)}
    v_lshl_add_u32 {v(vt0)}, {v(vt1)}, 2, {v(vt0)}
    v_mul_u32_u24 {v(vt0)}, 448, {v(vt0)}
    v_and_b32 {v(vt2)}, 1, {v(vGp)}
    v_lshl_add_u32 {v(vt0)}, {v(vt2)}, 5, {v(vt0)}
    s_mul_i32 {s(t0)}, {s(sW)}, 56
    v_add3_u32 {v(vQA)}, {v(vt0)}, {v(vSwp8)}, {s(t0)}
    v_add_u32 {v(vQA+1)}, {14*3584}, {v(vQA)}
    v_and_b32 {v(vt0)}, 31, {v(vLane)}
    v_mul_u32_u24 {v(vt0)}, 912, {v(vt0)}
    v_lshl_add_u32 {v(vt0)}, {v(vt1)}, 4, {v(vt0)}
    v_add_u32 {v(vQB)}, {L_H1}, {v(vt0)}''')
    a('s_waitcnt lgkmcnt(0)\ns_barrier')
    NB = 4
    vA = V.alloc(4*NB, 2); vBf = V.alloc(4*NB, 2); vQD = V.alloc(16, 2)
    def qrd(k):
        b = vQA + (k // 14); off = L_WQ + (k % 14) * 3584
        a(f'ds_read_b64_tr_b16 {v(vA+4*(k%NB),2)}, {v(b)} offset:{off}')
        a(f'ds_read_b64_tr_b16 {v(vA+4*(k%NB)+2,2)}, {v(b)} offset:{off+224}')
        a(f'ds_read_b128 {v(vBf+4*(k%NB),4)}, {v(vQB)} offset:{32*k}')
    for k in range(NB - 1): qrd(k)
    for k in range(28):
        if k + NB - 1 < 28: qrd(k + NB - 1)
        a(f'v_mfma_f32_32x32x16_bf16 {v(vQD,16)}, {v(vA+4*(k%NB),4)}, {v(vBf+4*(k%NB),4)}, {v(vQD,16) if k else 0}')
    a(f'''v_and_b32 {v(vt0)}, 7, {v(vLane)}
    v_lshrrev_b32 {v(vt1)}, 5, {v(vLane)}
    v_lshlrev_b32 {v(vt0)}, 4, {v(vt0)}
    v_lshl_add_u32 {v(vt0)}, {v(vt1)}, 7, {v(vt0)}
    v_add_u32 {v(vt0)}, {L_KOWN}, {v(vt0)}''')
    vKo = V.alloc(8, 2); vQp = V.alloc(8, 2)
    a(f'ds_read_b128 {v(vKo,4)}, {v(vt0)}\nds_read_b128 {v(vKo+4,4)}, {v(vt0)} offset:256')
    QS = 1.4426950408889634 * 28 ** -0.5
    a(f's_mov_b32 {s(t2)}, {f32(QS)}')
    for r in range(16): a(f'v_mul_f32 {v(vQD+r)}, {s(t2)}, {v(vQD+r)}')
    for r in range(8): a(f'v_cvt_pk_bf16_f32 {v(vQp+r)}, {v(vQD+2*r)}, {v(vQD+2*r+1)}')
    a(f'''s_mov_b32 exec_lo, 0
    v_mov_b32 {v(vQp+6)}, 0
    v_mov_b32 {v(vQp+7)}, 0
    s_mov_b64 exec, -1''')
    a(f'v_mfma_f32_32x32x16_bf16 {v(vQD,16)}, {v(vKo,4)}, {v(vQp,4)}, 0')
    a(f'v_mfma_f32_32x32x16_bf16 {v(vQD,16)}, {v(vKo+4,4)}, {v(vQp+4,4)}, {v(vQD,16)}')
    a(f'''s_lshl_b32 {s(t0)}, {s(sW)}, 11
    s_add_u32 {s(t0)}, {s(t0)}, {L_QX}
    v_add_u32 {v(vt2)}, {s(t0)}, {v(vL16)}
    ds_write_b128 {v(vt2)}, {v(vQp,4)}
    v_max3_f32 {v(vt0)}, {v(vQD)}, {v(vQD+1)}, {v(vQD+2)}
    v_max_f32 {v(vt0)}, {v(vt0)}, {v(vQD+3)}
    v_mov_b32 {v(vt1)}, {v(vt0)}
    v_permlane32_swap_b32 {v(vt0)}, {v(vt1)}
    v_max_f32 {v(vt0)}, {v(vt0)}, {v(vt1)}
    v_sub_f32 {v(vt0)}, {f32(200.0 if FORCE_SLOW else -40.0)}, {v(vt0)}
    s_mov_b32 exec_lo, 0
    v_cvt_pk_bf16_f32 {v(vQp+6)}, {v(vt0)}, 0
    s_mov_b64 exec, -1
    ds_write_b128 {v(vt2)}, {v(vQp+4,4)} offset:1024''')
    V.rel(vA, 4*NB); V.rel(vBf, 4*NB); V.rel(vQD, 16); V.rel(vKo, 8); V.rel(vQp, 8); V.rel(vQA, 2); V.rel(vQB); V.rel(vSwp8)
    stamp('qdone')

    NKV = 4
    vQ = V.alloc(32, 2); vO = V.alloc(64, 2); vS = V.alloc(32, 2); vP = V.alloc(8, 2); vKV = V.alloc(16*NKV, 2)
    vRB = V.alloc(3); vWOa = V.alloc()
    sKVb = S.alloc(); sWOo = S.alloc(); sWDo = S.alloc(); sW1o = S.alloc(); sW1m = S.alloc(); sTH = S.alloc(); sNB = S.alloc()
    a(f'''s_lshl_b32 {s(sKVb)}, {s(sW)}, 16
    s_add_u32 {s(sKVb)}, {s(sKVb)}, {WS_KV}
    s_lshl_b32 {s(t0)}, {s(sW)}, 10
    s_add_u32 {s(t0)}, {s(t0)}, {WS_FKV}''')
    a(f'''s_mul_i32 {s(sWOo)}, {s(sHQ)}, 7
    s_lshl_b32 {s(t1)}, {s(sW)}, 1
    s_add_u32 {s(sWOo)}, {s(sWOo)}, {s(t1)}
    s_lshl_b32 {s(sWOo)}, {s(sWOo)}, 14
    s_add_u32 {s(sWOo)}, {s(sWOo)}, {WS_WO}
    v_and_b32 {v(vt0)}, 1, {v(vGp)}
    v_lshrrev_b32 {v(vt1)}, 1, {v(vGp)}
    v_lshlrev_b32 {v(vt0)}, 14, {v(vt0)}
    v_lshl_add_u32 {v(vt0)}, {v(vt1)}, 8, {v(vt0)}
    v_lshl_add_u32 {v(vWOa)}, {v(vI)}, 4, {v(vt0)}
    s_cmp_ge_u32 {s(sM)}, 7
    s_cselect_b32 {s(sTH)}, 1, 0
    s_cselect_b32 {s(t1)}, 7, 0
    s_sub_u32 {s(sNB)}, {s(sM)}, {s(t1)}
    s_mul_i32 {s(sWDo)}, {s(sNB)}, 112
    s_mul_i32 {s(t1)}, {s(sW)}, 28
    s_add_u32 {s(sWDo)}, {s(sWDo)}, {s(t1)}
    s_lshl_b32 {s(sWDo)}, {s(sWDo)}, 11
    s_add_u32 {s(sWDo)}, {s(sWDo)}, {WS_WD}
    s_cmp_ge_u32 {s(sM)}, 14
    s_cselect_b32 {s(sWDo)}, {OOB}, {s(sWDo)}
    s_mul_i32 {s(sW1m)}, {s(sW)}, 7168
    s_mul_i32 {s(sW1o)}, {s(sM)}, {7*SLOT}
    s_add_u32 {s(sW1o)}, {s(sW1o)}, {s(sW1m)}
    s_add_u32 {s(sW1o)}, {s(sW1o)}, {WS_W1}''')
    a(f'''s_and_b32 {s(t1)}, {s(sW)}, 1
    s_lshl_b32 {s(t1)}, {s(t1)}, 10
    v_add_u32 {v(vWDa+1)}, {s(t1)}, {v(vL16)}
    s_xor_b32 {s(t1)}, {s(t1)}, 1024
    v_add_u32 {v(vWDa)}, {s(t1)}, {v(vL16)}''')
    for i in range(3):
        a(f'''s_add_u32 {s(t1)}, {s(sW)}, {1+i}
        s_and_b32 {s(t1)}, {s(t1)}, 3
        s_mul_i32 {s(t1)}, {s(t1)}, 12288
        s_add_u32 {s(t1)}, {s(t1)}, {L_RB + i*4096}
        v_add_u32 {v(vRB+i)}, {s(t1)}, {v(vL16)}''')
    poll(lambda: a(f'buffer_load_dwordx4 {v(vS,4)}, {v(vL16)}, {SR(sWS)}, {s(t0)} offen sc1'),
         lambda: tagcheck([vS + j for j in range(4)], vt0, mask=True))
    stamp('kvrcv')
    def kvload(kt):
        b = vKV + 16 * (kt % NKV)
        r = []
        if kt: r.append(f's_add_u32 {s(sKVb)}, {s(sKVb)}, 4096')
        for j in range(4): r.append(f'buffer_load_dwordx4 {v(b+4*j,4)}, {v(vL16)}, {SR(sWS)}, {s(sKVb)} offen offset:{1024*j} sc1')
        return r
    for kt in range(NKV - 1):
        for x in kvload(kt): a(x)
    ll = a.lab('Lnoloc')
    a(f'''s_lshr_b32 {s(t1)}, {s(sG)}, 2
    s_cmp_lg_u32 {s(t1)}, {s(sW)}
    s_cbranch_scc1 {ll}
    s_or_b32 {s(t1)}, {s(sTAG)}, {s(sXCC)}
    v_cmp_ne_u32 vcc, {s(t1)}, {v(vS)}
    s_and_b32 {s(t1)}, {s(sG)}, 3
    s_lshl_b32 {s(t1)}, {s(t1)}, 4
    s_lshr_b64 vcc, vcc, {s(t1)}
    s_and_b32 {s(t1)}, vcc_lo, 0xffff
    s_cselect_b32 {s(t1)}, 0, {0 if FORCE_NONLOCAL else 1}
    v_mov_b32 {v(vt0)}, {s(t1)}
    v_mov_b32 {v(vt1)}, {L_LOC}
    ds_write_b32 {v(vt1)}, {v(vt0)}
    {ll}:''')
    a('s_waitcnt lgkmcnt(0)\ns_barrier')
    for i in range(4):
        a(f'''s_add_u32 {s(t1)}, {s(sW)}, {1+i}
        s_and_b32 {s(t1)}, {s(t1)}, 3
        s_lshl_b32 {s(t1)}, {s(t1)}, 11
        s_add_u32 {s(t1)}, {s(t1)}, {L_QX}
        v_add_u32 {v(vt2)}, {s(t1)}, {v(vL16)}
        ds_read_b128 {v(vQ+8*i,4)}, {v(vt2)}
        ds_read_b128 {v(vQ+8*i+4,4)}, {v(vt2)} offset:1024''')
    a(f'v_mov_b32 {v(vt1)}, {L_LOC}\nds_read_b32 {v(vt0)}, {v(vt1)}\nv_readfirstlane_b32 {s(sLOC)}, {v(vt0)}')
    a('s_waitcnt lgkmcnt(0)\ns_barrier')

    stamp('att0')
    if opt.get('touch'):
        a(f'''v_lshlrev_b32 {v(vt2)}, 7, {v(vLane)}
        s_lshl_b32 {s(t0)}, {s(sG)}, 2
        s_add_u32 {s(t0)}, {s(t0)}, {s(sW)}
        s_mul_i32 {s(t0)}, {s(t0)}, {112*1024}
        s_mul_i32 {s(t1)}, {s(sM)}, 7168
        s_add_u32 {s(t0)}, {s(t0)}, {s(t1)}
        s_add_u32 {s(t0)}, {s(t0)}, {WS_HF}
        buffer_load_dword {v(vt3)}, {v(vt2)}, {SR(sWS)}, {s(t0)} offen sc1
        s_lshl_b32 {s(t0)}, {s(sL)}, 13
        s_add_u32 {s(t0)}, {s(t0)}, {WS_O}
        s_mul_i32 {s(t1)}, {s(sL)}, 7168
        s_add_u32 {s(t2)}, {s(t1)}, {WS_X2}
        s_cmp_eq_u32 {s(sW)}, 1
        s_cselect_b32 {s(t0)}, {s(t2)}, {s(t0)}
        s_add_u32 {s(t2)}, {s(t1)}, {WS_H2}
        s_cmp_eq_u32 {s(sW)}, 2
        s_cselect_b32 {s(t0)}, {s(t2)}, {s(t0)}
        buffer_load_dword {v(vt3)}, {v(vt2)}, {SR(sWS)}, {s(t0)} offen sc1
        buffer_load_dword {v(vt3)}, {v(vt2)}, {SR(sOUT)}, {s(t1)} offen sc1''')
    side = []
    for j in range(32):
        g = []
        if j and j % 8 == 0: g.append(f's_add_u32 {s(sWOo)}, {s(sWOo)}, 4096')
        g.append(f'buffer_load_dwordx4 {ac(4*j,4)}, {v(vWOa)}, {SR(sWS)}, {s(sWOo)} offen offset:{(j%8)*512} sc1')
        side.append(g)
    def w1dma(tile, slot):
        r = []
        for j in range(7):
            g = []
            if j % 4 == 0:
                g.append(f's_add_u32 {s(t4)}, {s(sW1o)}, {tile*SLOT + j*1024}')
                g.append(f's_add_u32 m0, {s(sW1m)}, {slot*SLOT + j*1024}')
                g.append('@gap')
            g.append((f'buffer_load_dwordx4 {v(vL16)}, {SR(sWS)}, {s(t4)} offen offset:{(j%4)*1024} sc1 lds', f'w1_{tile}'))
            r.append(g)
        return r
    for tile in range(4): side += w1dma(tile, tile)
    def wdreg(k, b): return (128 + 8*k + 4*b) if k < 16 else (8*(k-16) + 4*b)
    def wdload(k):
        r = []
        for b in range(2):
            g = []
            if k and k % 2 == 0 and b == 0: g.append(f's_add_u32 {s(sWDo)}, {s(sWDo)}, 4096')
            g.append(f'buffer_load_dwordx4 {ac(wdreg(k,b),4)}, {v(vWDa+b)}, {SR(sWS)}, {s(sWDo)} offen offset:{(k%2)*2048} sc1')
            r.append(g)
        return r
    for k in range(16): side += wdload(k)
    if opt.get('noside'): side = side[:opt.get('noside')-1]
    def emit_group(g):
        for x in g:
            if x == '@gap': continue
            if isinstance(x, tuple): a(x[0], w=[x[1]])
            else: a(x)

    def QK(n, c):
        kt, i = divmod(n, 4); b = vKV + 16 * (kt % NKV); d = v(vS + 16 * (n & 1), 16)
        return f'v_mfma_f32_32x32x16_bf16 {d}, {v(b+4*c,4)}, {v(vQ+8*i+4*c,4)}, {d if c else 0}'
    def PV(n, c):
        kt, i = divmod(n, 4); b = vKV + 16 * (kt % NKV); d = v(vO + 16 * i, 16)
        return f'v_mfma_f32_32x32x16_bf16 {d}, {v(b+8+4*c,4)}, {v(vP+4*c,4)}, {d if (kt or c) else 0}'
    def EX(n, r): return f'v_exp_f32 {v(vS+16*(n&1)+r)}, {v(vS+16*(n&1)+r)}'
    def CV(n, r): return f'v_cvt_pk_bf16_f32 {v(vP+r)}, {v(vS+16*(n&1)+2*r)}, {v(vS+16*(n&1)+2*r+1)}'
    def rbwrite(i):
        return [f'ds_write_b128 {v(vRB+i)}, {v(vO+16*i+4*q,4)} offset:{1024*q}' for q in range(4)]
    a(QK(0, 0)); a(QK(0, 1))
    N = 64
    sidx = 0
    first_side = 4; last_side = 58
    for n in range(N):
        kt, i = divmod(n, 4)
        extra = []
        if i >= 1 and kt + NKV - 1 < 16:
            l_ = kvload(kt + NKV - 1)
            if i == 1: extra.append(l_[:3])
            elif i == 2: extra.append(l_[3:4])
            else: extra.append(l_[4:5])
        if n >= first_side:
            want = min(len(side), -(-(n - first_side + 1) * len(side) // (last_side - first_side + 1)))
            while sidx < want: extra.append(side[sidx]); sidx += 1
        if n >= 62: extra.append(rbwrite(n - 62))
        pos = {0: [], 1: [], 2: [], 3: []}
        for j, g in enumerate(extra): pos[(j + 1) % 4 if n < 62 else 2].append(g)
        a(EX(n, 0))
        if n: a(CV(n - 1, 7))
        a(EX(n, 1)); a(EX(n, 2))
        if n: a(PV(n - 1, 1))
        for g in pos[0]: emit_group(g)
        a(EX(n, 3)); a(CV(n, 0)); a(EX(n, 4)); a(CV(n, 1)); a(EX(n, 5))
        if n + 1 < N: a(QK(n + 1, 0))
        for g in pos[1]: emit_group(g)
        a(EX(n, 6)); a(CV(n, 2)); a(EX(n, 7)); a(EX(n, 8)); a(CV(n, 3))
        if n + 1 < N: a(QK(n + 1, 1))
        for g in pos[2]: emit_group(g)
        a(EX(n, 9)); a(EX(n, 10)); a(CV(n, 4)); a(EX(n, 11)); a(EX(n, 12)); a(CV(n, 5))
        a(PV(n, 0))
        for g in pos[3]: emit_group(g)
        a(EX(n, 13)); a(EX(n, 14)); a(CV(n, 6)); a(EX(n, 15))
    assert sidx == len(side)
    a(CV(N - 1, 7))
    for x in rbwrite(2)[:2]: a(x)
    a(PV(N - 1, 1))
    for x in rbwrite(2)[2:]: a(x)
    stamp('attn')
    a(f'''s_mul_i32 {s(t1)}, {s(sW)}, 12288
    s_add_u32 {s(t1)}, {s(t1)}, {L_RB}
    v_add_u32 {v(vRr)}, {s(t1)}, {v(vL16)}''')
    a('s_waitcnt lgkmcnt(0)\ns_barrier')
    for i in range(3):
        for q in range(4): a(f'ds_read_b128 {v(vO+16*i+4*q,4)}, {v(vRr)} offset:{4096*i + 1024*q}')
    vOo = vO + 48
    for i in range(3):
        for r in range(0, 16, 2): a(f'v_pk_add_f32 {v(vOo+r,2)}, {v(vOo+r,2)}, {v(vO+16*i+r,2)}')
    lslow = a.lab('Lslow'); lnorm = a.lab('Lnorm')
    a(f'''v_mov_b32 {v(vt0)}, {v(vOo+12)}
    v_mov_b32 {v(vt1)}, {v(vOo+12)}
    v_permlane32_swap_b32 {v(vt0)}, {v(vt1)}
    v_subrev_u32 {v(vt0)}, {(127-60) << 23}, {v(vt1)}
    v_cmp_le_u32 vcc, {120 << 23}, {v(vt0)}
    s_cbranch_vccnz {lslow}
    {lnorm}:
    v_rcp_f32 {v(vt0)}, {v(vt1)}''')
    sOo = S.alloc()
    a(f'''s_lshl_b32 {s(sOo)}, {s(sT)}, 15
    s_lshl_b32 {s(t1)}, {s(sW)}, 11
    s_add_u32 {s(sOo)}, {s(sOo)}, {s(t1)}
    s_add_u32 {s(sOo)}, {s(sOo)}, {WS_O}
    s_lshl_b32 {s(t1)}, {s(sHQ)}, 13
    s_add_u32 {s(t0)}, {s(sOo)}, {s(t1)}
    s_lshl_b32 {s(t1)}, {s(sHQ)}, 11
    v_add_u32 {v(vt2)}, {s(t1)}, {v(vRr)}''')
    for r in range(16): a(f'v_mul_f32 {v(vOo+r)}, {v(vOo+r)}, {v(vt0)}')
    for r in range(8): a(f'v_cvt_pk_bf16_f32 {v(vP+r)}, {v(vOo+2*r)}, {v(vOo+2*r+1)}')
    a(f'''buffer_store_dwordx4 {v(vP,4)}, {v(vL16)}, {SR(sWS)}, {s(t0)} offen
    buffer_store_dwordx4 {v(vP+4,4)}, {v(vL16)}, {SR(sWS)}, {s(t0)} offen offset:1024
    ds_write_b128 {v(vt2)}, {v(vP,4)}
    ds_write_b128 {v(vt2)}, {v(vP+4,4)} offset:1024
    s_add_u32 {s(t0)}, {s(sFl)}, {WS_FO}''')
    signal(t0, True)
    def slowpath(vOo=vOo, vQ=vQ, vS=vS, vP=vP, vKV=vKV):
        qo = vQ + 24; mx = vt0
        a(f'''{lslow}:
        s_mov_b32 exec_lo, 0
        v_mov_b32 {v(qo+6)}, 0
        v_mov_b32 {v(qo+7)}, 0
        s_mov_b64 exec, -1
        v_mov_b32 {v(mx)}, 0xff800000
        s_mov_b32 {s(t0)}, {WS_KV}''')
        lp = a.lab('Lsl1')
        a(f'''{lp}:
        buffer_load_dwordx4 {v(vKV,4)}, {v(vL16)}, {SR(sWS)}, {s(t0)} offen sc1
        buffer_load_dwordx4 {v(vKV+4,4)}, {v(vL16)}, {SR(sWS)}, {s(t0)} offen offset:1024 sc1
        v_mfma_f32_32x32x16_bf16 {v(vS,16)}, {v(vKV,4)}, {v(qo,4)}, 0
        v_mfma_f32_32x32x16_bf16 {v(vS,16)}, {v(vKV+4,4)}, {v(qo+4,4)}, {v(vS,16)}''')
        for r in range(0, 16, 2): a(f'v_max3_f32 {v(mx)}, {v(mx)}, {v(vS+r)}, {v(vS+r+1)}')
        a(f'''s_add_u32 {s(t0)}, {s(t0)}, 4096
        s_cmp_lt_u32 {s(t0)}, {WS_KV + 64*4096}
        s_cbranch_scc1 {lp}
        v_mov_b32 {v(vt1)}, {v(mx)}
        v_permlane32_swap_b32 {v(mx)}, {v(vt1)}
        v_max_f32 {v(mx)}, {v(mx)}, {v(vt1)}
        v_sub_f32 {v(mx)}, 0, {v(mx)}
        v_and_b32 {v(vt1)}, 0xffff0000, {v(mx)}
        v_sub_f32 {v(vt2)}, {v(mx)}, {v(vt1)}
        v_and_b32 {v(vt3)}, 0xffff0000, {v(vt2)}
        v_sub_f32 {v(vt2)}, {v(vt2)}, {v(vt3)}
        s_mov_b32 exec_lo, 0
        v_cvt_pk_bf16_f32 {v(qo+6)}, {v(vt1)}, {v(vt3)}
        v_cvt_pk_bf16_f32 {v(qo+7)}, {v(vt2)}, 0
        s_mov_b64 exec, -1''')
        for r in range(16): a(f'v_mov_b32 {v(vOo+r)}, 0')
        lp = a.lab('Lsl2')
        a(f's_mov_b32 {s(t0)}, {WS_KV}\n{lp}:')
        for j in range(4): a(f'buffer_load_dwordx4 {v(vKV+4*j,4)}, {v(vL16)}, {SR(sWS)}, {s(t0)} offen offset:{1024*j} sc1')
        a(f'''v_mfma_f32_32x32x16_bf16 {v(vS,16)}, {v(vKV,4)}, {v(qo,4)}, 0
        v_mfma_f32_32x32x16_bf16 {v(vS,16)}, {v(vKV+4,4)}, {v(qo+4,4)}, {v(vS,16)}''')
        for r in range(16): a(EX(0, r))
        for r in range(8): a(CV(0, r))
        a(f'''v_mfma_f32_32x32x16_bf16 {v(vOo,16)}, {v(vKV+8,4)}, {v(vP,4)}, {v(vOo,16)}
        v_mfma_f32_32x32x16_bf16 {v(vOo,16)}, {v(vKV+12,4)}, {v(vP+4,4)}, {v(vOo,16)}
        s_add_u32 {s(t0)}, {s(t0)}, 4096
        s_cmp_lt_u32 {s(t0)}, {WS_KV + 64*4096}
        s_nop 7
        s_nop 7
        s_cbranch_scc1 {lp}
        v_mov_b32 {v(vt0)}, {v(vOo+12)}
        v_mov_b32 {v(vt1)}, {v(vOo+12)}
        v_permlane32_swap_b32 {v(vt0)}, {v(vt1)}
        s_branch {lnorm}''')
    V.rel(vQ, 32); V.rel(vO, 64); V.rel(vS, 32); V.rel(vP, 8); V.rel(vKV, 16*NKV); V.rel(vRB, 3); V.rel(vWOa)
    S.rel(sKVb); S.rel(sWOo); S.rel(sKVo)
    stamp('opub')

    def modvec_load(dst, vaddr, soff):
        for j, off in enumerate((0, 16, 64, 80)):
            a(f'buffer_load_dwordx4 {v(dst+4*j,4)}, {v(vaddr)}, {SR(sWS)}, {s(soff)} offen offset:{off} sc1')
    vMG = V.alloc(48, 2); vXr = V.alloc(8, 2)
    sCol = S.alloc()
    a(f'''v_lshrrev_b32 {v(vt0)}, 5, {v(vLane)}
    v_lshlrev_b32 {v(vHi32)}, 5, {v(vt0)}
    v_and_b32 {v(vt1)}, 31, {v(vLane)}
    v_mul_u32_u24 {v(vt1)}, 896, {v(vt1)}
    v_lshl_add_u32 {v(vRow)}, {v(vt0)}, 4, {v(vt1)}
    s_mul_i32 {s(sCol)}, {s(sHQ)}, 112
    s_lshl_b32 {s(t1)}, {s(sW)}, 5
    s_add_u32 {s(sCol)}, {s(sCol)}, {s(t1)}
    s_mul_i32 {s(t0)}, {s(sT)}, {32*896}
    s_lshl_b32 {s(t1)}, {s(sCol)}, 1
    s_add_u32 {s(t0)}, {s(t0)}, {s(t1)}
    buffer_load_dwordx4 {v(vXr,4)}, {v(vRow)}, {SR(sX)}, {s(t0)} offen
    buffer_load_dwordx4 {v(vXr+4,4)}, {v(vRow)}, {SR(sX)}, {s(t0)} offen offset:32
    s_lshl_b32 {s(t1)}, {s(sCol)}, 2
    s_add_u32 {s(t2)}, {s(t1)}, {WS_MODG + 4*896}
    s_add_u32 {s(t3)}, {s(t1)}, {WS_MODG + 4*1344}
    s_add_u32 {s(t1)}, {s(t1)}, {WS_MODG + 4*1792}''')
    def ld():
        modvec_load(vMG, vHi32, t2); modvec_load(vMG + 16, vHi32, t3); modvec_load(vMG + 32, vHi32, t1)
    poll(ld, lambda: tagcheck([vMG + 2*j + 1 for j in range(24)], vt0))
    a(f'''s_lshl_b32 {s(t0)}, {s(sT)}, 6
    s_lshl_b32 {s(t1)}, {s(sW)}, 2
    s_add_u32 {s(t0)}, {s(t0)}, {s(t1)}
    s_add_u32 {s(t0)}, {s(t0)}, {WS_FO}
    v_and_b32 {v(vt2)}, 3, {v(vLane)}
    v_lshlrev_b32 {v(vt2)}, 4, {v(vt2)}''')
    poll(lambda: a(f'buffer_load_dword {v(vt1)}, {v(vt2)}, {SR(sWS)}, {s(t0)} offen sc1'),
         lambda: a(f'v_cmp_ne_u32 vcc, {v(vTag)}, {v(vt1)}'))
    acquire()
    a(f's_mul_i32 {s(t2)}, {s(sW)}, 12288\ns_add_u32 {s(t2)}, {s(t2)}, {L_RB}')
    for j in range(1, 4):
        a(f'''s_add_u32 {s(t0)}, {s(sHQ)}, {j}
        s_and_b32 {s(t0)}, {s(t0)}, 3
        s_lshl_b32 {s(t1)}, {s(t0)}, 11
        s_add_u32 m0, {s(t1)}, {s(t2)}
        s_lshl_b32 {s(t0)}, {s(t0)}, 13
        s_add_u32 {s(t0)}, {s(t0)}, {s(sOo)}''')
        a(f'buffer_load_dwordx4 {v(vL16)}, {SR(sWS)}, {s(t0)} offen sc1 lds', w=['oimg'])
        a(f'buffer_load_dwordx4 {v(vL16)}, {SR(sWS)}, {s(t0)} offen offset:1024 sc1 lds', w=['oimg'])
    vGA = V.alloc(16, 2); vSB = V.alloc(16, 2); vCB = V.alloc(16, 2); vX2 = V.alloc(16, 2)
    for j in range(8):
        unpack(vGA + 2*j, vMG + 2*j); unpack(vSB + 2*j, vMG + 16 + 2*j); unpack(vCB + 2*j, vMG + 32 + 2*j); unpack(vX2 + 2*j, vXr + j)
    for j in range(8): a(f'v_pk_add_f32 {v(vCB+2*j,2)}, {v(vCB+2*j,2)}, 1.0 op_sel_hi:[1,0]')
    V.rel(vMG, 48)
    vOB = V.alloc()
    a(f'v_add_u32 {v(vOB)}, {L_RB}, {v(vL16)}')
    a.need('oimg')
    a('s_waitcnt lgkmcnt(0)\ns_barrier')
    stamp('orcv')
    NB = 6
    vBf = V.alloc(4*NB, 2); vAc = V.alloc(16, 2)
    def ord_(k): a(f'ds_read_b128 {v(vBf+4*(k%NB),4)}, {v(vOB)} offset:{((k>>1)&3)*12288 + (k>>3)*2048 + (k&1)*1024}')
    for k in range(NB - 1): ord_(k)
    for k in range(32):
        if k + NB - 1 < 32: ord_(k + NB - 1)
        a(f'v_mfma_f32_32x32x16_bf16 {v(vAc,16)}, {ac(4*k,4)}, {v(vBf+4*(k%NB),4)}, {v(vAc,16) if k else 0}')
    sFr = S.alloc(); sFr1 = S.alloc()
    a(f'''s_mul_i32 {s(sFr)}, {s(sT)}, 28672
    s_lshl_b32 {s(t1)}, {s(sCol)}, 6
    s_add_u32 {s(sFr)}, {s(sFr)}, {s(t1)}
    s_add_u32 {s(sFr1)}, {s(sFr)}, 1024
    s_cmp_eq_u32 {s(sW)}, 3
    s_cselect_b32 {s(sFr1)}, {OOB - WS_X2}, {s(sFr1)}
    s_add_u32 {s(t0)}, {s(sFr)}, {WS_X2}
    s_add_u32 {s(t1)}, {s(sFr1)}, {WS_X2}
    s_lshl_b32 {s(t2)}, {s(sW)}, 8
    s_add_u32 {s(t2)}, {s(t2)}, {L_RB + 3*12288 + 8192}
    v_lshl_add_u32 {v(vt2)}, {v(vLane)}, 2, {s(t2)}''')
    for r in range(0, 16, 2): a(f'v_pk_fma_f32 {v(vX2+r,2)}, {v(vAc+r,2)}, {v(vGA+r,2)}, {v(vX2+r,2)}')
    lz = a.lab('Lnz')
    a(f's_cmp_lg_u32 {s(sW)}, 3\ns_cbranch_scc1 {lz}')
    for r in range(8, 16): a(f'v_mov_b32 {v(vX2+r)}, 0')
    a(f'{lz}:')
    vq = vGA
    a(f'v_pk_add_f32 {v(vq,2)}, {v(vX2,2)}, {v(vX2+2,2)}\nv_pk_mul_f32 {v(vq+2,2)}, {v(vX2,2)}, {v(vX2,2)}')
    for r in range(2, 16, 2):
        if r > 2: a(f'v_pk_add_f32 {v(vq,2)}, {v(vq,2)}, {v(vX2+r,2)}')
        a(f'v_pk_fma_f32 {v(vq+2,2)}, {v(vX2+r,2)}, {v(vX2+r,2)}, {v(vq+2,2)}')
    a(f'''v_add_f32 {v(vq)}, {v(vq)}, {v(vq+1)}
    v_add_f32 {v(vq+2)}, {v(vq+2)}, {v(vq+3)}
    v_permlane32_swap_b32 {v(vq)}, {v(vq+2)}
    v_add_f32 {v(vq)}, {v(vq)}, {v(vq+2)}
    ds_write_b32 {v(vt2)}, {v(vq)}''')
    for r in range(8): a(f'v_cvt_pk_bf16_f32 {v(vXr+r)}, {v(vX2+2*r)}, {v(vX2+2*r+1)}')
    a(f'v_lshlrev_b32 {v(vt2)}, 2, {v(vLane)}\nv_add_u32 {v(vt2)}, {L_RB + 3*12288 + 8192}, {v(vt2)}')
    a('s_waitcnt lgkmcnt(0)\ns_barrier')
    for j in range(4): a(f'ds_read_b32 {v(vq+4+j)}, {v(vt2)} offset:{256*j}')
    a(f'''s_lshl_b32 {s(t2)}, {s(sT)}, 11
    s_add_u32 {s(t2)}, {s(t2)}, {WS_ST}
    s_lshr_b32 {s(t3)}, {s(sHQ)}, 1
    s_lshl_b32 {s(t3)}, {s(t3)}, 10
    s_and_b32 {s(t5)}, {s(sHQ)}, 1
    s_lshl_b32 {s(t5)}, {s(t5)}, 3
    s_add_u32 {s(t3)}, {s(t3)}, {s(t5)}
    s_add_u32 {s(t3)}, {s(t3)}, {s(t2)}
    s_cmp_eq_u32 {s(sW)}, 0
    s_cselect_b32 {s(t3)}, {s(t3)}, {OOB}
    v_mov_b32 {v(vq+1)}, {v(vTag)}
    v_add_f32 {v(vq+4)}, {v(vq+4)}, {v(vq+5)}
    v_add_f32 {v(vq+6)}, {v(vq+6)}, {v(vq+7)}
    v_add_f32 {v(vq)}, {v(vq+4)}, {v(vq+6)}''')
    ln = a.lab('Lst_nl'); le = a.lab('Lst_e')
    a(f'''s_cmp_eq_u32 {s(sLOC)}, 0
    s_cbranch_scc1 {ln}
    buffer_store_dwordx2 {v(vq,2)}, {v(vL16)}, {SR(sWS)}, {s(t3)} offen
    {le}:''')
    cold.append((ln, le, f'buffer_store_dwordx2 {v(vq,2)}, {v(vL16)}, {SR(sWS)}, {s(t3)} offen sc1'))
    a(f'''buffer_store_dwordx4 {v(vXr,4)}, {v(vL16)}, {SR(sWS)}, {s(t0)} offen
    buffer_store_dwordx4 {v(vXr+4,4)}, {v(vL16)}, {SR(sWS)}, {s(t1)} offen''')
    def ld():
        a(f'buffer_load_dwordx4 {v(vq+8,4)}, {v(vL16)}, {SR(sWS)}, {s(t2)} offen sc1')
        a(f'buffer_load_dwordx4 {v(vq+12,4)}, {v(vL16)}, {SR(sWS)}, {s(t2)} offen offset:1024 sc1')
    poll(ld, lambda: tagcheck([vq + 9, vq + 11, vq + 13, vq + 15], vt0))
    a(f'''v_add_f32 {v(vq+8)}, {v(vq+8)}, {v(vq+10)}
    v_add_f32 {v(vq+12)}, {v(vq+12)}, {v(vq+14)}
    v_add_f32 {v(vq+8)}, {v(vq+8)}, {v(vq+12)}
    v_mul_f32 {v(vq+8)}, {f32(1/448)}, {v(vq+8)}
    v_mov_b32 {v(vq+9)}, {v(vq+8)}
    v_permlane32_swap_b32 {v(vq+8)}, {v(vq+9)}
    v_fma_f32 {v(vq+9)}, -{v(vq+8)}, {v(vq+8)}, {v(vq+9)}
    v_max_f32 {v(vq+9)}, 0, {v(vq+9)}
    v_add_f32 {v(vq+9)}, {f32(1e-5)}, {v(vq+9)}
    v_rsq_f32 {v(vq+10)}, {v(vq+9)}
    s_add_u32 {s(t0)}, {s(sFr)}, {WS_H2}
    v_mul_f32 {v(vq+11)}, -{v(vq+8)}, {v(vq+10)}
    s_add_u32 {s(t1)}, {s(sFr1)}, {WS_H2}''')
    for r in range(0, 16, 2):
        a(f'v_pk_fma_f32 {v(vX2+r,2)}, {v(vX2+r,2)}, {v(vq+10,2)}, {v(vq+10,2)} op_sel:[0,0,1] op_sel_hi:[1,0,1]')
    for r in range(0, 16, 2): a(f'v_pk_fma_f32 {v(vX2+r,2)}, {v(vX2+r,2)}, {v(vCB+r,2)}, {v(vSB+r,2)}')
    for r in range(8): a(f'v_cvt_pk_bf16_f32 {v(vAc+r)}, {v(vX2+2*r)}, {v(vX2+2*r+1)}')
    a(f'''buffer_store_dwordx4 {v(vAc,4)}, {v(vL16)}, {SR(sWS)}, {s(t0)} offen
    buffer_store_dwordx4 {v(vAc+4,4)}, {v(vL16)}, {SR(sWS)}, {s(t1)} offen
    s_add_u32 {s(t0)}, {s(sFl)}, {WS_FX}''')
    signal(t0, True)
    V.rel(vBf, 4*NB); V.rel(vAc, 16); V.rel(vGA, 16); V.rel(vSB, 16); V.rel(vCB, 16); V.rel(vX2, 16); V.rel(vXr, 8); V.rel(vOB)
    S.rel(sFr); S.rel(sFr1); S.rel(sCol); S.rel(sOo)
    stamp('h2pub')

    vB = V.alloc(112, 2); NA = 8
    vA = V.alloc(4*NA, 2); vAcc = V.alloc(64, 2); vHp = V.alloc(8, 2); vA1 = V.alloc(3)
    sTp = S.alloc(); sHo = S.alloc()
    a(f'''s_lshl_b32 {s(sTp)}, {s(sG)}, 2
    s_add_u32 {s(sTp)}, {s(sTp)}, {s(sW)}
    s_lshl_b32 {s(t0)}, {s(sTp)}, 6
    s_add_u32 {s(t0)}, {s(t0)}, {WS_FX}
    v_lshlrev_b32 {v(vt2)}, 2, {v(vI)}
    s_mul_i32 {s(t1)}, {s(sTp)}, 28672
    s_add_u32 {s(t1)}, {s(t1)}, {WS_H2}
    s_mul_i32 {s(sHo)}, {s(sTp)}, {112*1024}
    s_mul_i32 {s(t2)}, {s(sM)}, 7168
    s_add_u32 {s(sHo)}, {s(sHo)}, {s(t2)}
    s_add_u32 {s(sHo)}, {s(sHo)}, {WS_HF}
    v_mov_b32 {v(vA1)}, {v(vL16)}
    v_add_u32 {v(vA1+1)}, {2*SLOT}, {v(vL16)}
    v_add_u32 {v(vA1+2)}, {4*SLOT}, {v(vL16)}''')
    poll(lambda: a(f'buffer_load_dword {v(vt1)}, {v(vt2)}, {SR(sWS)}, {s(t0)} offen sc1'),
         lambda: a(f'v_cmp_ne_u32 vcc, {v(vTag)}, {v(vt1)}'))
    acquire()
    stamp('h2rcv')
    for k in range(28):
        if k and k % 4 == 0: a(f's_add_u32 {s(t1)}, {s(t1)}, 4096')
        a(f'buffer_load_dwordx4 {v(vB+4*k,4)}, {v(vL16)}, {SR(sWS)}, {s(t1)} offen offset:{(k%4)*1024} sc1')
    for g in w1dma(4, 4): emit_group(g)
    slot_of = {0: 0, 1: 1, 2: 2, 3: 3, 4: 4, 5: 0, 6: 1}
    seq = [(j, k) for k in range(28) for j in range(3)] + [(j, k) for j in range(3, 7) for k in range(28)]
    def ard(n):
        j, k = seq[n]; sl = slot_of[j]
        a(f'ds_read_b128 {v(vA+4*(n%NA),4)}, {v(vA1 + sl//2)} offset:{(sl%2)*SLOT + k*1024}')
    def epi(j):
        c = vAcc + 16 * (j % 4); h = vHp + 4 * (j & 1)
        r = []
        for q in range(8): r.append(f'v_max_f32 {v(c+q)}, 0, {v(c+q)}')
        for q in range(8): r.append(f'v_mul_f32 {v(c+q)}, {v(c+q)}, {v(c+8+q)}')
        for q in range(4): r.append(f'v_cvt_pk_bf16_f32 {v(h+q)}, {v(c+2*q)}, {v(c+2*q+1)}')
        if j == 4: r.append(f's_add_u32 {s(sHo)}, {s(sHo)}, 4096')
        r.append(f'buffer_store_dwordx4 {v(h,4)}, {v(vL16)}, {SR(sWS)}, {s(sHo)} offen offset:{(j%4)*1024}')
        return r
    fill = {}
    def spread(items, start, per):
        n = start
        while items:
            fill.setdefault(n, []).extend(items[:per]); items = items[per:]; n += 1
        return n
    wdl = []
    for k in range(16, 28):
        for g in wdload(k): wdl.append(g)
    for j, g in enumerate(wdl): fill.setdefault(30 + 2*j, []).extend(g)
    e = spread(epi(0), 84 + 4, 3); e = spread(epi(1), e, 3); e = spread(epi(2), e, 3)
    assert e <= 112
    d56 = w1dma(5, 0) + w1dma(6, 1)
    for j, g in enumerate(d56): fill.setdefault(85 + j, []).extend(g)
    spread(epi(3), 112 + 5, 2); spread(epi(4), 140 + 5, 2); spread(epi(5), 168 + 5, 2)
    PD = NA - 2
    issued = 0
    def limit(n):
        return 140 if n < 140 - PD else 196
    for n in range(196):
        if n in (1, 84, 140 - PD): stamp(f'e{n}')
        if n == 84:
            a.need('w1_4')
            a('s_barrier')
        if n == 140 - PD:
            a.need('w1_5', 'w1_6')
            a('s_barrier')
        while issued < min(196, n + PD + 1, limit(n)): ard(issued); issued += 1
        j, k = seq[n]; d = v(vAcc + 16 * (j % 4), 16)
        a(f'v_mfma_f32_32x32x16_bf16 {d}, {v(vA+4*(n%NA),4)}, {v(vB+4*k,4)}, {d if k else 0}')
        emit_group(fill.get(n, []))
    for x in epi(6): a(x)
    stamp('e196')
    a(f's_add_u32 {s(t0)}, {s(sFl)}, {WS_FH}')
    signal(t0, True)
    V.rel(vB, 112); V.rel(vA, 4*NA); V.rel(vAcc, 64); V.rel(vHp, 8); V.rel(vA1, 3)
    S.rel(sTp); S.rel(sHo)
    stamp('hpub')
    if TS:
        for j in range(2): a(f'v_writelane_b32 {v(vTS)}, s100, {nts[0]-1+j}')
    a(f's_cmp_ge_u32 {s(sM)}, 14\ns_cbranch_scc1 Lfin')

    vAcc = V.alloc(64, 2); NH = 16
    vH = V.alloc(8*NH, 2); vGB = V.alloc(16, 2); vXr = V.alloc(8, 2); vRB = V.alloc(3)
    sH0 = S.alloc(); sH1 = S.alloc(); sTo = S.alloc(); sCol = S.alloc()
    a(f'''s_lshl_b32 {s(sTo)}, {s(sG)}, 1
    s_add_u32 {s(sTo)}, {s(sTo)}, {s(sTH)}
    s_lshl_b32 {s(sTo)}, {s(sTo)}, 1
    s_lshr_b32 {s(t1)}, {s(sW)}, 1
    s_add_u32 {s(sTo)}, {s(sTo)}, {s(t1)}
    s_mul_i32 {s(t2)}, {s(sW)}, 28672
    s_add_u32 {s(t2)}, {s(t2)}, {WS_HF}
    s_mul_i32 {s(sH1)}, {s(sTo)}, {112*1024}
    s_add_u32 {s(sH1)}, {s(sH1)}, {s(t2)}
    s_xor_b32 {s(t1)}, {s(sTo)}, 1
    s_mul_i32 {s(sH0)}, {s(t1)}, {112*1024}
    s_add_u32 {s(sH0)}, {s(sH0)}, {s(t2)}
    s_lshl_b32 {s(sCol)}, {s(sNB)}, 1
    s_and_b32 {s(t1)}, {s(sW)}, 1
    s_add_u32 {s(sCol)}, {s(sCol)}, {s(t1)}
    s_lshl_b32 {s(sCol)}, {s(sCol)}, 5
    s_mul_i32 {s(t1)}, {s(sTo)}, 28672
    s_lshl_b32 {s(t2)}, {s(sCol)}, 6
    s_add_u32 {s(t1)}, {s(t1)}, {s(t2)}
    s_add_u32 {s(t1)}, {s(t1)}, {WS_X2}
    buffer_load_dwordx4 {v(vXr,4)}, {v(vL16)}, {SR(sWS)}, {s(t1)} offen sc1
    buffer_load_dwordx4 {v(vXr+4,4)}, {v(vL16)}, {SR(sWS)}, {s(t1)} offen offset:1024 sc1
    s_lshl_b32 {s(t2)}, {s(sCol)}, 2
    s_add_u32 {s(t2)}, {s(t2)}, {WS_MODG + 4*2240}''')
    poll(lambda: modvec_load(vGB, vHi32, t2), lambda: tagcheck([vGB + 2*j + 1 for j in range(8)], vt0))
    a(f'''s_lshl_b32 {s(t0)}, {s(sG)}, 2
    s_add_u32 {s(t0)}, {s(t0)}, {s(sW)}
    s_lshl_b32 {s(t0)}, {s(t0)}, 6
    s_lshl_b32 {s(t1)}, {s(sTH)}, 3
    s_add_u32 {s(t0)}, {s(t0)}, {s(t1)}
    s_add_u32 {s(t0)}, {s(t0)}, {WS_FH}
    v_and_b32 {v(vt2)}, 3, {v(vLane)}
    v_lshlrev_b32 {v(vt2)}, 4, {v(vt2)}
    v_and_b32 {v(vt1)}, 4, {v(vLane)}
    v_add_u32 {v(vt2)}, {v(vt2)}, {v(vt1)}''')
    for i in range(3):
        a(f'''s_xor_b32 {s(t1)}, {s(sW)}, {i ^ 3}
        s_mul_i32 {s(t1)}, {s(t1)}, 12288
        s_add_u32 {s(t1)}, {s(t1)}, {L_RB + i*4096}
        v_add_u32 {v(vRB+i)}, {s(t1)}, {v(vL16)}''')
    poll(lambda: a(f'buffer_load_dword {v(vt1)}, {v(vt2)}, {SR(sWS)}, {s(t0)} offen sc1'),
         lambda: a(f'v_cmp_ne_u32 vcc, {v(vTag)}, {v(vt1)}'))
    acquire()
    stamp('hrcv')
    def hload(k):
        if k and k % 4 == 0: a(f's_add_u32 {s(sH0)}, {s(sH0)}, 4096\ns_add_u32 {s(sH1)}, {s(sH1)}, 4096')
        for t_, so in ((0, sH0), (1, sH1)):
            a(f'buffer_load_dwordx4 {v(vH+8*(k%NH)+4*t_,4)}, {v(vL16)}, {SR(sWS)}, {s(so)} offen offset:{(k%4)*1024} sc1')
    for k in range(NH): hload(k)
    for k in range(28):
        for t_ in range(2):
            for b in range(2):
                d = v(vAcc + 16 * (2*t_ + b), 16)
                a(f'v_mfma_f32_32x32x16_bf16 {d}, {ac(wdreg(k,b),4)}, {v(vH+8*(k%NH)+4*t_,4)}, {d if k else 0}')
        if k + NH < 28: hload(k + NH)
    stamp('f_mm')
    vGf = vH; vXf = vH + 16
    for j in range(8): unpack(vGf + 2*j, vGB + 2*j)
    for i in range(3):
        for q in range(4): a(f'ds_write_b128 {v(vRB+i)}, {v(vAcc+16*i+4*q,4)} offset:{1024*q}')
    for j in range(8): unpack(vXf + 2*j, vXr + j)
    a(f'''s_mul_i32 {s(t0)}, {s(sTo)}, {32*896}
    s_lshl_b32 {s(t1)}, {s(sCol)}, 1
    s_add_u32 {s(t0)}, {s(t0)}, {s(t1)}''')
    a('s_waitcnt lgkmcnt(0)\ns_barrier')
    for i in range(3):
        for q in range(4): a(f'ds_read_b128 {v(vAcc+16*i+4*q,4)}, {v(vRr)} offset:{4096*i + 1024*q}')
    vOo = vAcc + 48
    for i in range(3):
        for r in range(0, 16, 2): a(f'v_pk_add_f32 {v(vOo+r,2)}, {v(vOo+r,2)}, {v(vAcc+16*i+r,2)}')
    for r in range(0, 16, 2): a(f'v_pk_fma_f32 {v(vOo+r,2)}, {v(vOo+r,2)}, {v(vGf+r,2)}, {v(vXf+r,2)}')
    for r in range(8): a(f'v_cvt_pk_bf16_f32 {v(vXr+r)}, {v(vOo+2*r)}, {v(vOo+2*r+1)}')
    a(f'''buffer_store_dwordx4 {v(vXr,4)}, {v(vRow)}, {SR(sOUT)}, {s(t0)} offen
    buffer_store_dwordx4 {v(vXr+4,4)}, {v(vRow)}, {SR(sOUT)}, {s(t0)} offen offset:32''')
    a('Lfin:')
    a(f'''s_cmp_lg_u32 {s(sFl)}, 0
    s_cbranch_scc1 Lnoep
    s_mov_b64 exec, 1
    buffer_store_dword {v(vTag)}, off, {SR(sWS)}, 0
    s_mov_b64 exec, -1
    Lnoep:''')
    if not TS: stamp('end')
    if TS:
        a('s_waitcnt vmcnt(0)')
        stamp('end')
        a(f'v_writelane_b32 {v(vTS)}, s100, {nts[0]-1}')
        a(f'v_writelane_b32 {v(vTS)}, {s(sB)}, 31')
        a(f'v_writelane_b32 {v(vTS)}, {s(sLOC)}, 30')
        a(f's_lshl_b32 {s(t0)}, {s(sFl)}, 5\ns_add_u32 {s(t0)}, {s(t0)}, {WS_TS}\nv_lshlrev_b32 {v(vt0)}, 2, {v(vLane)}\ns_mov_b32 exec_hi, 0')
        a(f'buffer_store_dword {v(vTS)}, {v(vt0)}, {SR(sWS)}, {s(t0)} offen')
    a('Lend:\ns_endpgm')
    slowpath()
    for ln, le, code in cold:
        a(f'{ln}:'); a(code); a(f's_branch {le}')
    body = a.finalize(verbose=opt.get('verbose', False))
    if opt.get('allsc1'):
        body = '\n'.join(l + ' sc1' if l.strip().startswith('buffer_store') and 'sc1' not in l else l for l in body.split('\n'))
    hdr = open('adaLN_cond__grouped_kv_mqa__glu_gated_reglu__prompt.s.ref').read().split('; Override launch')[0]
    text = hdr + f'''; Generated by the author's own generator script (persistent single launch, 256 workgroups, one per CU).
; @launch grid=(256,1,1) block=(256,1,1) lds={LDS_BYTES}
.amdgcn_target "amdgcn-amd-amdhsa--gfx950"
.text
.globl {KNAME}
.p2align 8
.type {KNAME},@function
{KNAME}:
{body}.section .rodata,"a"
.p2align 6
.amdhsa_kernel {KNAME}
  .amdhsa_next_free_vgpr 512
  .amdhsa_next_free_sgpr 102
  .amdhsa_accum_offset 256
  .amdhsa_group_segment_fixed_size 0
  .amdhsa_kernarg_size 112
  .amdhsa_user_sgpr_count 2
  .amdhsa_user_sgpr_kernarg_segment_ptr 1
  .amdhsa_system_sgpr_workgroup_id_x 1
.end_amdhsa_kernel
'''
    if opt.get('verbose'): print('vgpr hi', V.hi, 'sgpr hi', S.hi, 'text bytes', len(text))
    return text, tsnames

if __name__ == '__main__':
    out = sys.argv[1] if len(sys.argv) > 1 else 'adaLN_cond__grouped_kv_mqa__glu_gated_reglu__prompt.s'
    opt = {'verbose': True}
    for x in sys.argv[2:]:
        k, _, val = x.partition('=')
        opt[k] = (int(val) if val.isdigit() else val) if val else True
    t, _ = generate(opt)
    open(out, 'w').write(t)
```
